```python
import torch

def _softmax(x, axis=-1):
    return torch.softmax(x, dim=axis)
def _gelu(x):
    return torch.nn.functional.gelu(x, approximate="tanh")
def _silu(x):
    return torch.nn.functional.silu(x)
def _sigmoid(x):
    return torch.sigmoid(x)
def _layernorm(x, axis=-1, eps=1e-5):
    m = x.mean(dim=axis, keepdim=True)
    v = x.var(dim=axis, keepdim=True, unbiased=False)
    return (x - m) / torch.sqrt(v + eps)
def _scatter_add(tgt, idx, src, axis=0):
    return tgt.clone().index_add_(axis, idx, src)
def _segment_sum(src, seg, n):
    out = torch.zeros((n,) + src.shape[1:], dtype=src.dtype)
    return out.index_add_(0, seg, src)
def _pad(x, pw):
    flat = tuple(v for pair in reversed(pw) for v in pair)
    return torch.nn.functional.pad(x, flat)

kernel_name = 'concat_heads__ssm_conv_s4__spectral_gfnet__prompt'

def setup_inputs():

    _w = (lambda a: (lambda t: t.to(torch.bfloat16) if t.is_floating_point() else t)(torch.as_tensor(a)))
    def _A_setup():
        B, L, D, N = 1, 2048, 576, 128
        A_re = -(lambda _x: torch.exp(torch.as_tensor(_x)))((lambda *s: torch.randn(*s, dtype=torch.bfloat16) * 3.2)(D, N))
        A_im = torch.pi * (lambda *s: torch.randn(*s, dtype=torch.bfloat16) * 0.05)(D, N)
        B_re = (lambda *s: torch.randn(*s, dtype=torch.bfloat16) * 0.1)(D, N)
        B_im = (lambda *s: torch.randn(*s, dtype=torch.bfloat16) * 0.1)(D, N)
        C_re = (lambda *s: torch.randn(*s, dtype=torch.bfloat16) * 0.1)(D, N)
        C_im = (lambda *s: torch.randn(*s, dtype=torch.bfloat16) * 0.1)(D, N)
        log_dt = (lambda *s: torch.randn(*s, dtype=torch.bfloat16) * 0.05)(D) * 0.5 - 4.0
        Dskip = (lambda *s: torch.randn(*s, dtype=torch.bfloat16) * 0.05)(D)
        return {
            "u": _w((lambda *s: torch.randn(*s, dtype=torch.bfloat16) * 0.05)(B, L, D)),
            "A_re": _w(A_re),
            "A_im": _w(A_im),
            "B_re": _w(B_re),
            "B_im": _w(B_im),
            "C_re": _w(C_re),
            "C_im": _w(C_im),
            "log_dt": _w(log_dt),
            "Dskip": _w(Dskip),
        }
    _A_in = _A_setup()

    def _B_setup():
        B, S, D = 1, 2048, 576
        Df = D // 2 + 1
        return {
            "x": _w((lambda *s: torch.randn(*s, dtype=torch.bfloat16) * 0.05)(B, S, D)),
            "w_r": _w((lambda *s: torch.randn(*s, dtype=torch.bfloat16) * 1.6)(S, Df) * 0.02),
            "w_i": _w((lambda *s: torch.randn(*s, dtype=torch.bfloat16) * 1.6)(S, Df) * 0.02),
        }
    _B_in = _B_setup()

    return {
        "A_u": _A_in["u"],
        "A_A_re": _A_in["A_re"],
        "A_A_im": _A_in["A_im"],
        "A_B_re": _A_in["B_re"],
        "A_B_im": _A_in["B_im"],
        "A_C_re": _A_in["C_re"],
        "A_C_im": _A_in["C_im"],
        "A_log_dt": _A_in["log_dt"],
        "A_Dskip": _A_in["Dskip"],
        "B_x": _B_in["x"],
        "B_w_r": _B_in["w_r"],
        "B_w_i": _B_in["w_i"],
    }

def reference(A_u, A_A_re, A_A_im, A_B_re, A_B_im, A_C_re, A_C_im, A_log_dt, A_Dskip, B_x, B_w_r, B_w_i):
    def _A_ref(u, A_re, A_im, B_re, B_im, C_re, C_im, log_dt, Dskip):
        Bsz, L, D = u.shape
        dt = torch.exp(log_dt)[:, None]
        A = A_re + 1j * A_im
        Bc = B_re + 1j * B_im
        Cc = C_re + 1j * C_im
        logdA = dt * A
        dB = dt * Bc
        l = (lambda x, dt: x.to(dt))(torch.arange(L), A_re.dtype)
        P = torch.exp(logdA[:, :, None] * l[None, None, :])
        K = torch.einsum("dn,dnl,dn->dl", Cc, P, dB).real
        L2 = 2 * L
        Kp = _pad(K, ((0, 0), (0, L)))
        up = (lambda x, *d: x.permute(*d))(u, 0, 2, 1)
        up = _pad(up, ((0, 0), (0, 0), (0, L)))
        Kf = (lambda x, axes=(-2,-1): torch.fft.rfft2(x.float(), dim=axes))(Kp[:, None, :], axes=(-2, -1))
        Uf = (lambda x, axes=(-2,-1): torch.fft.rfft2(x.float(), dim=axes))(up[:, :, None, :], axes=(-2, -1))
        Yf = Uf * Kf[None, :, :, :]
        y = (lambda x, s, axes=(-2,-1): torch.fft.irfft2(x, s=s, dim=axes).to(torch.bfloat16))(Yf, (1, L2), axes=(-2, -1))[:, :, 0, :L]
        y = (lambda x, *d: x.permute(*d))(y, 0, 2, 1) + u * Dskip[None, None, :]
        return y

    def _B_ref(x, w_r, w_i):
        B, S, D = x.shape
        X = (lambda x, axes=(-2,-1): torch.fft.rfft2(x.float(), dim=axes))(x, axes=(-2, -1))
        W = w_r + 1j * w_i
        X = X * W
        y = (lambda x, s, axes=(-2,-1): torch.fft.irfft2(x, s=s, dim=axes).to(torch.bfloat16))(X, (S, D), axes=(-2, -1))
        return y

    a = _A_ref(A_u, A_A_re, A_A_im, A_B_re, A_B_im, A_C_re, A_C_im, A_log_dt, A_Dskip)
    b = _B_ref(B_x, B_w_r, B_w_i)
    return torch.concatenate([a, b], axis=-1)
```

```python
import re, struct

def f2u(x):
    return struct.unpack("<I", struct.pack("<f", x))[0]
def flit(x):
    return "0x%08x" % f2u(x)

TRANS = ("v_exp_f32", "v_log_f32", "v_rcp_f32", "v_rsq_f32", "v_sqrt_f32", "v_sin_f32", "v_cos_f32")
REG_RE = re.compile(r"(?<![\w.])(-?)\|?([vas])(?:(\d+)|\[(\d+):(\d+)\])")

def regs_of(tok):
    tok = tok.strip()
    out = []
    if tok in ("vcc",): return [("s", "vcc")]
    if tok in ("exec",): return [("s", "exec")]
    if tok in ("m0",): return [("s", "m0")]
    m = re.fullmatch(r"-?\|?(?:abs\()?([vas])(?:(\d+)|\[(\d+):(\d+)\])\)?\|?", tok)
    if not m: return []
    k = m.group(1)
    if m.group(2) is not None:
        return [(k, int(m.group(2)))]
    return [(k, i) for i in range(int(m.group(3)), int(m.group(4)) + 1)]

class Ins:
    __slots__ = ("text", "op", "dst", "src", "kind", "passes", "srcC", "storedata")

def parse(text):
    t = text.split(";")[0].strip()
    parts = t.split(None, 1)
    op = parts[0]
    ops = []
    if len(parts) > 1:
        cur = ""; depth = 0
        for ch in parts[1]:
            if ch == "[": depth += 1
            if ch == "]": depth -= 1
            if ch == "," and depth == 0:
                ops.append(cur.strip()); cur = ""
            else:
                cur += ch
        ops.append(cur.strip())
        last = ops[-1].split()
        ops[-1] = last[0] if last else ""
        mods = last[1:]
    else:
        mods = []
    i = Ins(); i.text = text; i.op = op; i.dst = []; i.src = []; i.kind = "other"; i.passes = 0; i.srcC = []; i.storedata = []
    base = re.sub(r"_(e32|e64|dpp|sdwa)$", "", op)
    R = [regs_of(o) for o in ops]
    if base.startswith("v_mfma"):
        i.kind = "mfma"; i.passes = 8 if "32x32" in base else 4
        i.dst = R[0]; i.src = R[1] + R[2]; i.srcC = R[3]
    elif base.startswith("v_cmp"):
        i.kind = "valu"; i.dst = R[0]; i.src = sum(R[1:], [])
    elif base in ("v_readfirstlane_b32", "v_readlane_b32"):
        i.kind = "readlane"; i.dst = R[0]; i.src = sum(R[1:], [])
    elif base == "v_swap_b32" or base.startswith("v_permlane"):
        i.kind = "perm" if base.startswith("v_permlane") else "valu"; i.dst = R[0] + R[1]; i.src = R[0] + R[1]
    elif base.startswith("v_"):
        i.kind = "trans" if base in TRANS else "valu"
        i.dst = list(R[0]); i.src = sum(R[1:], [])
        if base in ("v_add_co_u32", "v_sub_co_u32", "v_addc_co_u32"):
            i.dst += R[1]; i.src = sum(R[2:], [])
        if base in ("v_fmac_f32", "v_dot2c_f32_bf16", "v_pk_fmac_f16"): i.src += R[0]
        if base == "v_cndmask_b32" and len(ops) == 3: i.src += [("s", "vcc")]
        if op.endswith("_dpp") or any(m.startswith(("quad_perm", "row_", "wave_")) for m in mods): i.kind = "dpp"
    elif base.startswith("buffer_load") or base.startswith("global_load"):
        i.kind = "vmem"
        if "lds" in mods or "lds" in base:
            i.kind = "vmemlds"; i.src = sum(R, []) + [("s", "m0")]
        else:
            i.dst = R[0]; i.src = sum(R[1:], [])
    elif base.startswith("buffer_store") or base.startswith("buffer_atomic"):
        i.kind = "vmem"; i.src = sum(R, [])
        if "x4" in base or "x3" in base: i.storedata = R[0]
    elif base.startswith("global_store"):
        i.kind = "vmem"; i.src = sum(R, [])
        if "x4" in base or "x3" in base: i.storedata = R[1]
    elif base.startswith("ds_read") or base.startswith("ds_bpermute") or base.startswith("ds_swizzle"):
        i.kind = "ds"; i.dst = R[0]; i.src = sum(R[1:], [])
    elif base.startswith("ds_"):
        i.kind = "ds"; i.src = sum(R, [])
    elif base.startswith("s_"):
        i.kind = "salu"
        if base.startswith(("s_cmp", "s_cbranch", "s_branch", "s_waitcnt", "s_barrier", "s_nop", "s_endpgm", "s_setprio", "s_sleep")):
            i.src = sum(R, [])
        else:
            i.dst = R[0] if R else []; i.src = sum(R[1:], [])
    return i

VALUK = ("valu", "trans", "dpp", "perm", "readlane")

def need(p, c):
    n = 0
    pd = set(p.dst);
    cs = set(c.src); cd = set(c.dst); cC = set(c.srcC)
    if p.kind in VALUK:
        vd = {r for r in pd if r[0] in "va"}
        sd = {r for r in pd if r[0] == "s"}
        if c.kind == "mfma" and vd & (cs | cC): n = max(n, 2)
        if p.kind == "trans" and c.kind in VALUK + ("mfma",) and c.kind != "trans" and vd & cs: n = max(n, 1)
        if p.kind == "trans" and c.kind in ("vmem", "ds", "vmemlds") and vd & cs: n = max(n, 1)
        if c.kind in ("dpp", "perm") and vd & cs: n = max(n, 2)
        if c.kind == "readlane" and vd & cs: n = max(n, 1)
        if sd:
            if c.kind in VALUK and sd & cs: n = max(n, 4 if c.kind == "readlane" else 2)
            if c.kind in ("vmem", "vmemlds") and sd & cs: n = max(n, 5)
            if c.kind == "salu" and sd & cs: n = max(n, 2)
            if ("s", "exec") in sd and c.kind in ("mfma", "dpp", "perm", "readlane"): n = max(n, 5)
    if p.kind == "mfma":
        big = 12 if p.passes == 8 else 8
        if c.kind == "mfma":
            if pd & cs: n = max(n, big)
            if pd & cC:
                if not (list(p.dst) == list(c.srcC) and p.passes == c.passes): n = max(n, big - 2)
            elif pd & cd: n = max(n, big)
        elif c.kind in VALUK + ("vmem", "ds", "vmemlds"):
            if pd & (cs | cd): n = max(n, big)
        if c.kind in VALUK + ("vmem", "ds") and set(p.srcC) & cd: n = max(n, 7 if p.passes == 8 else 3)
    if p.kind == "salu" and ("s", "m0") in pd and c.kind == "vmemlds": n = max(n, 1)
    if p.storedata and set(p.storedata) & cd: n = max(n, 2)
    return n

class Prog:
    def __init__(self):
        self.lines = []
        self.hist = []
    def raw(self, s):
        self.lines.append(s)
    def label(self, name):
        self.lines.append(name + ":")
    def fence(self):
        self.hist = []
    def __call__(self, text):
        for ln in text.split("\n"):
            ln = ln.strip()
            if not ln: continue
            if ln.startswith(";"):
                self.lines.append("    " + ln); continue
            if ln.endswith(":"):
                self.lines.append(ln); continue
            self.ins(ln)
    def ins(self, text):
        c = parse(text)
        req = 0
        dist = 0
        for p in reversed(self.hist[-24:]):
            if p is None:
                dist += 1; continue
            n = need(p, c)
            if n - dist > req: req = n - dist
            dist += 1
        while req > 0:
            k = min(req, 16)
            self.lines.append(f"    s_nop {k-1}")
            self.hist += [None] * k
            req -= k
        self.lines.append("    " + text)
        if c.op == "s_nop":
            self.hist += [None] * (int(text.split()[1]) + 1)
        else:
            self.hist.append(c)
    def text(self):
        return "\n".join(self.lines) + "\n"

def v(a, n=1):
    return f"v{a}" if n == 1 else f"v[{a}:{a+n-1}]"
def s(a, n=1):
    return f"s{a}" if n == 1 else f"s[{a}:{a+n-1}]"
```

```python
import sys, math
from asmlib import Prog, v, s, flit

NAME = "concat_heads__ssm_conv_s4__spectral_gfnet__prompt"
WS_Y, WS_Z, WS_R, WS_UT, WS_YT = 0x0, 0x300000, 0x600000, 0xB00000, 0xE00000
YPITCH = 10240
RPITCH = 8448
P_U, P_ARE, P_AIM, P_BRE, P_BIM, P_CRE, P_CIM, P_LDT, P_DSK, P_X, P_WR, P_WI, P_OUT, P_WS = 16, 18, 20, 22, 24, 26, 28, 30, 32, 34, 36, 38, 40, 42
SGN2 = "0x80008000"
LOG2E = 1.4426950408889634

def prologue(p):
    p(f"""
    s_load_dwordx16 s[16:31], s[0:1], 0
    s_load_dwordx8 s[32:39], s[0:1], 64
    s_load_dwordx2 s[40:41], s[0:1], 96
    s_load_dwordx2 s[42:43], s[0:1], 112
    v_lshrrev_b32 v1, 6, v0
    v_and_b32 v0, 63, v0
    v_readfirstlane_b32 s3, v1
    """)

def srd(p, d, base, off, size):
    if off == 0:
        p(f"s_mov_b32 s{d}, s{base}\ns_mov_b32 s{d+1}, s{base+1}")
    else:
        p(f"s_add_u32 s{d}, s{base}, {off}\ns_addc_u32 s{d+1}, s{base+1}, 0")
    p(f"s_mov_b32 s{d+2}, {size}\ns_mov_b32 s{d+3}, 0x20000")

def lanes16(p, vc, vg, fc, fg):
    p(f"""
    v_and_b32 v{vc}, 15, v0
    v_lshrrev_b32 v{vg}, 4, v0
    v_cvt_f32_u32 v{fc}, v{vc}
    v_cvt_f32_u32 v{fg}, v{vg}
    """)

def angles(p, x0, step, mults, tmp):
    for i, m in enumerate(mults):
        if m == 0: p(f"v_mov_b32 v{tmp+i}, v{x0}")
        elif m == 1: p(f"v_add_f32 v{tmp+i}, v{x0}, v{step}")
        else: p(f"v_fmamk_f32 v{tmp+i}, v{step}, {flit(float(m))}, v{x0}")

def cossin(p, ang, n, c, sn):
    for i in range(n): p(f"v_cos_f32 v{c+i}, v{ang+i}")
    for i in range(n): p(f"v_sin_f32 v{sn+i}, v{ang+i}")

def cmul_tw(p, re, im, c, sn, ore, oim, conj_tw):
    for h in (0, 2):
        p(f"v_pk_mul_f32 {v(ore+h,2)}, {v(re+h,2)}, {v(c+h,2)}")
        p(f"v_pk_mul_f32 {v(oim+h,2)}, {v(im+h,2)}, {v(c+h,2)}")
    n1 = "" if conj_tw else " neg_lo:[0,1,0] neg_hi:[0,1,0]"
    n2 = " neg_lo:[0,1,0] neg_hi:[0,1,0]" if conj_tw else ""
    for h in (0, 2):
        p(f"v_pk_fma_f32 {v(ore+h,2)}, {v(im+h,2)}, {v(sn+h,2)}, {v(ore+h,2)}{n1}")
        p(f"v_pk_fma_f32 {v(oim+h,2)}, {v(re+h,2)}, {v(sn+h,2)}, {v(oim+h,2)}{n2}")

def gfrag(p, sS2, dst, t0, inverse):
    p(f"""
    v_bfe_u32 v{t0}, v0, 1, 4
    v_cvt_f32_u32 v{t0}, v{t0}
    v_lshrrev_b32 v{t0+1}, 5, v0
    v_cvt_f32_u32 v{t0+1}, v{t0+1}
    v_and_b32 v{t0+2}, 1, v0
    v_cvt_f32_u32 v{t0+2}, v{t0+2}
    v_mul_f32 v{t0+2}, 0.25, v{t0+2}
    v_cvt_f32_u32 v{t0+3}, s{sS2}
    v_mul_f32 v{t0+3}, {flit(1/2048)}, v{t0+3}
    """.replace("0.25,", flit(0.25) + ","))
    if not inverse:
        p(f"""
        v_fmac_f32 v{t0+3}, 0.5, v{t0+1}
        v_fma_f32 v{t0+2}, v{t0}, v{t0+3}, v{t0+2}
        v_mul_f32 v{t0+3}, {flit(0.125)}, v{t0}
        """)
    else:
        p(f"""
        v_fmac_f32 v{t0+3}, {flit(0.125)}, v{t0}
        v_sub_f32 v{t0+3}, 0, v{t0+3}
        v_mul_f32 v{t0+1}, 4.0, v{t0+1}
        v_fma_f32 v{t0+2}, v{t0+1}, v{t0+3}, v{t0+2}
        """)
    angles(p, t0+2, t0+3, [0, 1, 2, 3], t0+4)
    cossin(p, t0+4, 4, t0+8, t0+12)
    for r in range(4): p(f"v_cvt_pk_bf16_f32 v{dst+r}, v{t0+8+r}, v{t0+12+r}")

MF16 = "v_mfma_f32_16x16x32_bf16"
MF32 = "v_mfma_f32_32x32x16_bf16"

def role_b1(p, sid):
    XB, EB = 0, 9216
    vc, vg, fc, fg = 2, 3, 4, 5
    C18, S18, TWC, TWS, B2 = 8, 12, 16, 24, 32
    G = 64
    T = 68
    p("s_waitcnt lgkmcnt(0)")
    srd(p, 44, P_X, 0, 2359296)
    srd(p, 48, P_WS, WS_Y, 256 * YPITCH)
    p(f"""
    s_mul_i32 s4, s3, 589824
    s_mul_i32 s5, s{sid}, 1152
    s_add_u32 s4, s4, s5
    s_add_u32 s5, s4, 294912
    s_mul_i32 s6, s3, 2304
    v_lshlrev_b32 v1, 4, v0
    s_mov_b32 m0, s6
    buffer_load_dwordx4 v1, s[44:47], s4 offen lds
    s_mov_b64 exec, 0xff
    buffer_load_dwordx4 v1, s[44:47], s4 offen offset:1024 lds
    s_add_u32 s7, s6, 1152
    s_mov_b32 m0, s7
    buffer_load_dwordx4 v1, s[44:47], s5 offen offset:1024 lds
    s_mov_b64 exec, -1
    buffer_load_dwordx4 v1, s[44:47], s5 offen lds
    """)
    lanes16(p, vc, vg, fc, fg)
    p(f"v_mul_f32 v{T}, {flit(1/18)}, v{fc}\nv_mul_f32 v{T+1}, {flit(8.0)}, v{fg}\nv_mul_f32 v{T+1}, v{T+1}, v{T}")
    angles(p, T+1, T, list(range(8)), T+2)
    cossin(p, T+2, 8, T+10, T+18)
    for e in range(4):
        p(f"v_cvt_pk_bf16_f32 v{C18+e}, v{T+10+2*e}, v{T+11+2*e}")
        p(f"v_cvt_pk_bf16_f32 v{S18+e}, -v{T+18+2*e}, -v{T+19+2*e}")
    p("s_mov_b32 exec_lo, 0")
    for e in (1, 2, 3): p(f"v_mov_b32 v{C18+e}, 0\nv_mov_b32 v{S18+e}, 0")
    p("s_mov_b32 exec_hi, 0xffff0000")
    p(f"v_mov_b32 v{C18}, 0\nv_mov_b32 v{S18}, 0")
    p("s_mov_b64 exec, -1")
    p(f"v_mul_f32 v{T}, {flit(1/576)}, v{fc}\nv_mul_f32 v{T+1}, 4.0, v{fg}\nv_mul_f32 v{T+1}, v{T+1}, v{T}")
    angles(p, T+1, T, [0, 1, 2, 3, 16, 17, 18, 19], T+2)
    cossin(p, T+2, 8, TWC, TWS)
    p(f"v_mul_f32 v{T}, {flit(1/32)}, v{fc}\nv_mul_f32 v{T+1}, 4.0, v{fg}\nv_mul_f32 v{T+1}, v{T+1}, v{T}")
    angles(p, T+1, T, [0, 1, 2, 3], T+2)
    cossin(p, T+2, 4, T+6, T+10)
    def b2(part, t, tau): return B2 + 4 * (part * 4 + t * 2 + tau)
    for r in range(4):
        p(f"v_cvt_pk_bf16_f32 v{b2(0,0,0)+r}, v{T+6+r}, v{T+10+r}")
        p(f"v_cvt_pk_bf16_f32 v{b2(1,0,0)+r}, -v{T+10+r}, v{T+6+r}")
    p(f"v_and_b32 v{T}, 1, v0\nv_mul_u32_u24 v{T}, 0x8000, v{T}\nv_lshl_or_b32 v{T}, v{T}, 16, v{T}")
    for part in (0, 1):
        for r in range(4):
            flip = (r % 2 == 1) if part == 0 else (r % 2 == 0)
            if flip: p(f"v_xor_b32 v{b2(part,0,1)+r}, {SGN2}, v{b2(part,0,0)+r}")
            else: p(f"v_mov_b32 v{b2(part,0,1)+r}, v{b2(part,0,0)+r}")
        for tau in (0, 1):
            for r in range(4):
                p(f"v_xor_b32 v{b2(part,1,tau)+r}, v{T}, v{b2(part,0,tau)+r}")
    gfrag(p, sid, G, T, False)
    AD = 6
    p(f"""
    v_bfe_u32 v{T}, v0, 2, 2
    v_lshl_add_u32 v{T}, v{vg}, 3, v{T}
    v_add_u32 v{T+1}, 4, v{T}
    v_min_u32 v{T}, 17, v{T}
    v_min_u32 v{T+1}, 17, v{T+1}
    v_and_b32 v{T+2}, 3, v0
    v_lshlrev_b32 v{T+2}, 3, v{T+2}
    v_add_u32 v{T+2}, s6, v{T+2}
    v_lshl_add_u32 v{AD}, v{T}, 6, v{T+2}
    v_lshl_add_u32 v{AD+1}, v{T+1}, 6, v{T+2}
    """)
    A = 68
    D = 84
    TM = 116
    EA = 124
    p(f"""
    s_mul_i32 s7, s3, 2560
    s_add_u32 s7, s7, {EB}
    v_mul_u32_u24 v{EA}, 18, v{vc}
    v_lshl_add_u32 v{EA}, v{vg}, 2, v{EA}
    v_sub_u32 v{EA+1}, 285, v{EA}
    v_lshl_add_u32 v{EA}, v{EA}, 2, s7
    v_lshl_add_u32 v{EA+1}, v{EA+1}, 2, s7
    v_and_b32 v{EA+3}, 31, v0
    v_lshlrev_b32 v{EA+3}, 2, v{EA+3}
    s_lshl_b32 s8, s3, 7
    v_add_u32 v{EA+3}, s8, v{EA+3}
    v_lshrrev_b32 v{TM}, 5, v0
    v_mul_u32_u24 v{TM+1}, 5120, v{TM}
    v_add_u32 v{EA+2}, v{TM+1}, v{EA+3}
    v_add_u32 v{EA+2}, {EB}, v{EA+2}
    v_mul_u32_u24 v{TM+1}, 2560, v{TM}
    v_add_u32 v{EA+3}, v{TM+1}, v{EA+3}
    s_mul_i32 s9, s{sid}, {YPITCH}
    s_add_u32 s10, s9, 5120
    s_waitcnt vmcnt(0)
    """)
    for row in (0, 1):
        for t in (0, 1):
            a = A + 4 * (2 * row + t)
            p(f"ds_read_b64_tr_b16 {v(a,2)}, v{AD} offset:{XB + 1152*row + 32*t}")
            p(f"ds_read_b64_tr_b16 {v(a+2,2)}, v{AD+1} offset:{XB + 1152*row + 32*t}")
    for row in (0, 1):
        for t in (0, 1):
            i = 2 * row + t
            a = A + 4 * i
            p(f"s_waitcnt lgkmcnt({6 - 2*i})")
            p(f"{MF16} {v(D+8*i,4)}, {v(a,4)}, {v(C18,4)}, 0")
            p(f"{MF16} {v(D+8*i+4,4)}, {v(a,4)}, {v(S18,4)}, 0")
    for row in (0, 1):
        for t in (0, 1):
            i = 2 * row + t
            cmul_tw(p, D+8*i, D+8*i+4, TWC+4*t, TWS+4*t, TM, TM+4, True)
            for r in range(4): p(f"v_cvt_pk_bf16_f32 v{A+4*i+r}, v{TM+r}, v{TM+4+r}")
    for row in (0, 1):
        for tau in (0, 1):
            for part in (0, 1):
                d = D + 8 * (2 * row + tau) + 4 * part
                p(f"{MF16} {v(d,4)}, {v(A+8*row,4)}, {v(b2(part,0,tau),4)}, 0")
                p(f"{MF16} {v(d,4)}, {v(A+8*row+4,4)}, {v(b2(part,1,tau),4)}, {v(d,4)}")
    for row in (0, 1):
        for tau in (0, 1):
            i = 2 * row + tau
            for r in range(4): p(f"v_cvt_pk_bf16_f32 v{A+4*i+r}, v{D+8*i+r}, v{D+8*i+4+r}")
    for pair, ex in ((0, "0xffff"), (1, "0")):
        p(f"s_mov_b32 exec_hi, {ex}")
        for row in (0, 1):
            for tau in (0, 1):
                i = 2 * row + tau
                r0 = 2 * pair
                if tau == 0: o0, o1 = r0, r0 + 1
                else: o0, o1 = 3 - r0, 2 - r0
                if row == 0:
                    p(f"ds_write2_b32 v{EA+tau}, v{A+4*i+r0}, v{A+4*i+r0+1} offset0:{o0} offset1:{o1}")
                else:
                    p(f"ds_write_b32 v{EA+tau}, v{A+4*i+r0} offset:{1280+4*o0}")
                    p(f"ds_write_b32 v{EA+tau}, v{A+4*i+r0+1} offset:{1280+4*o1}")
    p("s_mov_b64 exec, -1\ns_waitcnt lgkmcnt(0)\ns_barrier")
    def rd(n):
        a = A + 4 * n
        p(f"ds_read2st64_b32 {v(a,2)}, v{EA+2} offset0:{2*n} offset1:{2*n+5}")
        p(f"ds_read2st64_b32 {v(a+2,2)}, v{EA+2} offset0:{2*n+10} offset1:{2*n+15}")
    def fin(n, d):
        for m in range(4): p(f"v_cvt_pk_bf16_f32 v{TM+m}, v{d+2*m}, v{d+2*m+1}")
        for m in range(4):
            p(f"buffer_store_dword v{TM+m}, v{EA+3}, s[48:51], s{9 + m//2} offen offset:{1280*(m%2) + 512*n}")
    rd(0); rd(1); rd(2)
    p("s_waitcnt lgkmcnt(4)")
    p(f"{MF32} {v(D,16)}, {v(G,4)}, {v(A,4)}, 0")
    p("s_waitcnt lgkmcnt(2)")
    p(f"{MF32} {v(D+16,16)}, {v(G,4)}, {v(A+4,4)}, 0")
    p("s_waitcnt lgkmcnt(0)")
    p(f"{MF32} {v(32,16)}, {v(G,4)}, {v(A+8,4)}, 0")
    fin(0, D)
    TM2 = TM
    for m in range(4): p(f"v_cvt_pk_bf16_f32 v{TM+4+m}, v{D+16+2*m}, v{D+16+2*m+1}")
    for m in range(4):
        p(f"buffer_store_dword v{TM+4+m}, v{EA+3}, s[48:51], s{9 + m//2} offen offset:{1280*(m%2) + 512}")
    for m in range(4): p(f"v_cvt_pk_bf16_f32 v{A+m}, v{32+2*m}, v{32+2*m+1}")
    p("s_cmp_ge_u32 s3, 2\ns_cbranch_scc1 L_b1_end")
    for m in range(4):
        p(f"buffer_store_dword v{A+m}, v{EA+3}, s[48:51], s{9 + m//2} offen offset:{1280*(m%2) + 1024}")
    p.label("L_b1_end")
    p("s_endpgm")

def role_b3(p, sid):
    EB = 0
    vc, vg, fc, fg = 2, 3, 4, 5
    B2 = 8
    TWC, TWS = 40, 48
    BL = 56
    G = 64
    ZD = 68
    T = 84
    p("s_waitcnt lgkmcnt(0)")
    srd(p, 44, P_WS, WS_Z, 256 * YPITCH)
    srd(p, 48, P_OUT, 0, 2048 * 2304)
    p(f"""
    v_and_b32 v6, 31, v0
    v_lshlrev_b32 v6, 2, v6
    s_lshl_b32 s8, s3, 7
    v_add_u32 v6, s8, v6
    v_lshrrev_b32 v7, 5, v0
    v_mul_u32_u24 v1, 5120, v7
    v_add_u32 v1, v1, v6
    s_mul_i32 s9, s{sid}, {YPITCH}
    s_add_u32 s10, s9, 512
    s_add_u32 s11, s9, 1024
    """)
    for n in range(3):
        for r in range(4):
            p(f"buffer_load_dword v{ZD+4*n+r}, v1, s[44:47], s{9+n} offen offset:{1280*r}")
    gfrag(p, sid, G, T, True)
    lanes16(p, vc, vg, fc, fg)
    FA = T
    p(f"""
    v_and_b32 v{T+1}, 12, v{vc}
    v_add_u32 v{T+1}, v{T+1}, v{vc}
    v_cvt_f32_u32 v{FA}, v{T+1}
    v_mul_f32 v{T+1}, 4.0, v{fg}
    """)
    def b2(part, c, t): return B2 + 4 * (part * 4 + c * 2 + t)
    p(f"v_and_b32 v{T+2}, 1, v0\nv_mul_u32_u24 v{T+2}, 0x8000, v{T+2}\nv_lshl_or_b32 v{T+2}, v{T+2}, 16, v{T+2}\nv_xor_b32 v{T+2}, 0x80000000, v{T+2}")
    for t in (0, 1):
        if t == 1: p(f"v_add_f32 v{FA}, 4.0, v{FA}")
        p(f"v_mul_f32 v{T+3}, {flit(1/32)}, v{FA}\nv_mul_f32 v{T+4}, v{T+1}, v{T+3}")
        angles(p, T+4, T+3, [0, 1, 2, 3], T+5)
        cossin(p, T+5, 4, T+9, T+13)
        for r in range(4):
            p(f"v_cvt_pk_bf16_f32 v{b2(0,0,t)+r}, v{T+9+r}, -v{T+13+r}")
            p(f"v_cvt_pk_bf16_f32 v{b2(1,0,t)+r}, v{T+13+r}, v{T+9+r}")
        for r in range(4):
            p(f"v_xor_b32 v{b2(0,1,t)+r}, v{T+2}, v{b2(0,0,t)+r}")
            p(f"v_xor_b32 v{b2(1,1,t)+r}, v{T+2}, v{b2(1,0,t)+r}")
        p(f"v_mul_f32 v{T+3}, {flit(1/576)}, v{FA}\nv_mul_f32 v{T+4}, v{T+1}, v{T+3}")
        angles(p, T+4, T+3, [0, 1, 2, 3], T+5)
        cossin(p, T+5, 4, TWC+4*t, TWS+4*t)
    sc = 1.0 / (2048 * 576)
    WG = T + 17
    for r in range(4): p(f"v_mov_b32 v{WG+r}, {flit(2*sc)}")
    p(f"s_mov_b64 exec, 0xffff\nv_mov_b32 v{WG}, {flit(sc)}")
    p(f"s_mov_b32 exec_lo, 0\ns_mov_b32 exec_hi, -1\nv_mov_b32 v{WG+1}, {flit(sc)}\nv_mov_b32 v{WG+2}, 0\nv_mov_b32 v{WG+3}, 0")
    p(f"s_mov_b32 exec_hi, 0xffff0000\nv_mov_b32 v{WG}, 0\nv_mov_b32 v{WG+1}, 0\ns_mov_b64 exec, -1")
    for bt in (0, 1):
        if bt == 0: p(f"v_mul_f32 v{T+3}, {flit(1/18)}, v{fc}")
        else: p(f"v_add_f32 v{T+3}, {flit(16/18)}, v{T+3}")
        p(f"v_mul_f32 v{T+4}, v{T+1}, v{T+3}")
        angles(p, T+4, T+3, [0, 1, 2, 3], T+5)
        cossin(p, T+5, 4, T+9, T+13)
        for r in range(4):
            p(f"v_mul_f32 v{T+9+r}, v{WG+r}, v{T+9+r}\nv_mul_f32 v{T+13+r}, v{WG+r}, v{T+13+r}")
            p(f"v_cvt_pk_bf16_f32 v{BL+4*bt+r}, v{T+9+r}, -v{T+13+r}")
    EA = 124
    p(f"""
    v_mul_u32_u24 v{EA}, 2560, v7
    v_add_u32 v{EA}, v{EA}, v6
    v_min_u32 v{T}, 9, v{vc}
    v_mul_u32_u24 v{T+1}, 72, v{vg}
    v_add_u32 v{T}, v{T}, v{T+1}
    s_mul_i32 s7, s3, 2560
    v_lshl_add_u32 v{EA+1}, v{T}, 2, s7
    v_sub_u32 v{T}, {288-54}, v{T}
    v_lshl_add_u32 v{EA+2}, v{T}, 2, s7
    v_lshlrev_b32 v{EA+3}, 6, v{vc}
    v_lshl_add_u32 v{EA+3}, v{vg}, 4, v{EA+3}
    s_mul_i32 s12, s3, {2*256*2304}
    s_mul_i32 s13, s{sid}, 2304
    s_add_u32 s12, s12, s13
    s_add_u32 s13, s12, {256*2304}
    """)
    D = 84
    TM = 116
    p("s_waitcnt vmcnt(8)")
    p(f"{MF32} {v(D,16)}, {v(G,4)}, {v(ZD,4)}, 0")
    p("s_waitcnt vmcnt(4)")
    p(f"{MF32} {v(D+16,16)}, {v(G,4)}, {v(ZD+4,4)}, 0")
    def wr(n, d, tmp):
        for m in range(4): p(f"v_cvt_pk_bf16_f32 v{tmp+m}, v{d+2*m}, v{d+2*m+1}")
        for m in range(4):
            p(f"ds_write_b32 v{EA}, v{tmp+m} offset:{EB + 5120*(m//2) + 1280*(m%2) + 512*n}")
    wr(0, D, TM)
    p("s_waitcnt vmcnt(0)")
    p(f"{MF32} {v(D,16)}, {v(G,4)}, {v(ZD+8,4)}, 0")
    wr(1, D+16, TM+4)
    for m in range(4): p(f"v_cvt_pk_bf16_f32 v{ZD+m}, v{D+2*m}, v{D+2*m+1}")
    p("s_cmp_ge_u32 s3, 2\ns_cbranch_scc1 L_b3_skip")
    for m in range(4):
        p(f"ds_write_b32 v{EA}, v{ZD+m} offset:{EB + 5120*(m//2) + 1280*(m%2) + 1024}")
    p.label("L_b3_skip")
    p("s_waitcnt lgkmcnt(0)\ns_barrier")
    A = 68
    for row in (0, 1):
        if row == 1: p(f"v_add_u32 v{EA+1}, 1280, v{EA+1}\nv_add_u32 v{EA+2}, 1280, v{EA+2}")
        a = A + 8 * row
        p(f"ds_read2_b32 {v(a,2)}, v{EA+1} offset0:0 offset1:18")
        p(f"ds_read2_b32 {v(a+2,2)}, v{EA+1} offset0:36 offset1:54")
        p(f"ds_read2_b32 {v(a+4,2)}, v{EA+2} offset0:54 offset1:36")
        p(f"ds_read2_b32 {v(a+6,2)}, v{EA+2} offset0:18 offset1:0")
    for row in (0, 1):
        p(f"s_waitcnt lgkmcnt({4 - 4*row})")
        for t in (0, 1):
            for part in (0, 1):
                d = D + 8 * (2 * row + t) + 4 * part
                p(f"{MF16} {v(d,4)}, {v(A+8*row,4)}, {v(b2(part,0,t),4)}, 0")
                p(f"{MF16} {v(d,4)}, {v(A+8*row+4,4)}, {v(b2(part,1,t),4)}, {v(d,4)}")
    for row in (0, 1):
        for t in (0, 1):
            i = 2 * row + t
            cmul_tw(p, D+8*i, D+8*i+4, TWC+4*t, TWS+4*t, TM, TM+4, False)
            for r in range(4): p(f"v_cvt_pk_bf16_f32 v{A+4*i+r}, v{TM+r}, v{TM+4+r}")
    for row in (0, 1):
        for bt in (0, 1):
            for t in (0, 1):
                d = D + 8 * (2 * row + bt) + 4 * t
                p(f"{MF16} {v(d,4)}, {v(A+8*row+4*t,4)}, {v(BL+4*bt,4)}, 0")
    for row in (0, 1):
        for bt in (0, 1):
            i = 2 * row + bt
            for m in range(4): p(f"v_cvt_pk_bf16_f32 v{A+4*i+m}, v{D+8*i+2*m}, v{D+8*i+2*m+1}")
    for row in (0, 1):
        p(f"buffer_store_dwordx4 {v(A+8*row,4)}, v{EA+3}, s[48:51], s{12+row} offen offset:1152")
    p("s_mov_b32 exec_lo, 0x00030003\ns_mov_b32 exec_hi, 0x00030003")
    for row in (0, 1):
        p(f"buffer_store_dwordx4 {v(A+8*row+4,4)}, v{EA+3}, s[48:51], s{12+row} offen offset:{1152+1024}")
    p("s_endpgm")

def role_b2(p, sid):
    vc, vg, fc, fg = 2, 3, 4, 5
    FW = 8
    TWC, TWS = 24, 28
    X = 32
    WR, WI = 48, 56
    D = 64
    TM = 96
    T = 64
    p("s_waitcnt lgkmcnt(0)")
    srd(p, 44, P_WS, WS_Y, 256 * YPITCH)
    srd(p, 48, P_WS, WS_Z, 256 * YPITCH)
    srd(p, 52, P_WR, 0, 2048 * 578)
    srd(p, 56, P_WI, 0, 2048 * 578)
    p(f"""
    s_and_b32 s4, s{sid}, 7
    s_lshr_b32 s5, s{sid}, 3
    s_lshl_b32 s5, s5, 2
    s_add_u32 s5, s5, s3
    v_and_b32 v{vc}, 15, v0
    v_lshrrev_b32 v{vg}, 4, v0
    v_lshl_add_u32 v6, v{vg}, 6, v{vc}
    v_mul_u32_u24 v1, {YPITCH}, v6
    s_mul_i32 s6, s4, 1280
    s_lshl_b32 s7, s5, 4
    s_add_u32 s8, s6, s7
    s_add_u32 s9, s8, {16*YPITCH}
    s_add_u32 s10, s8, {32*YPITCH}
    s_add_u32 s11, s8, {48*YPITCH}
    """)
    for r in range(4): p(f"buffer_load_dwordx4 {v(X+4*r,4)}, v1, s[44:47], s{8+r} offen")
    p(f"""
    v_mul_u32_u24 v7, {8*578}, v6
    s_mul_i32 s6, s4, 578
    s_lshl_b32 s7, s5, 3
    s_add_u32 s12, s6, s7
    s_add_u32 s13, s12, {128*578}
    s_add_u32 s14, s12, {256*578}
    s_add_u32 s15, s12, {384*578}
    """)
    for r in range(4):
        p(f"buffer_load_dwordx2 {v(WR+2*r,2)}, v7, s[52:55], s{12+r} offen")
        p(f"buffer_load_dwordx2 {v(WI+2*r,2)}, v7, s[56:59], s{12+r} offen")
    p(f"v_cvt_f32_u32 v{fc}, v{vc}\nv_cvt_f32_u32 v{fg}, v{vg}\nv_mul_f32 v{fg}, 4.0, v{fg}")
    p(f"v_mul_f32 v{T}, {flit(1/16)}, v{fc}\nv_mul_f32 v{T+1}, v{fg}, v{T}")
    angles(p, T+1, T, [0, 1, 2, 3], T+2)
    cossin(p, T+2, 4, T+6, T+10)
    for r in range(4):
        p(f"v_cvt_pk_bf16_f32 v{FW+r}, v{T+6+r}, v{T+10+r}")
        p(f"v_cvt_pk_bf16_f32 v{FW+4+r}, -v{T+10+r}, v{T+6+r}")
        p(f"v_cvt_pk_bf16_f32 v{FW+8+r}, v{T+6+r}, -v{T+10+r}")
        p(f"v_cvt_pk_bf16_f32 v{FW+12+r}, v{T+10+r}, v{T+6+r}")
    p(f"v_mul_f32 v{T}, {flit(1/256)}, v{fc}\nv_mul_f32 v{T+1}, v{fg}, v{T}")
    angles(p, T+1, T, [0, 1, 2, 3], T+2)
    cossin(p, T+2, 4, TWC, TWS)
    p("s_waitcnt vmcnt(8)")
    for i in range(4):
        for j in range(i + 1, 4): p(f"v_swap_b32 v{X+4*i+j}, v{X+4*j+i}")
    def stage(mat, data_is_A):
        for q in range(4):
            for part in (0, 1):
                d = D + 8 * q + 4 * part
                if data_is_A: p(f"{MF16} {v(d,4)}, {v(X+4*q,4)}, {v(mat+4*part,4)}, 0")
                else: p(f"{MF16} {v(d,4)}, {v(mat+4*part,4)}, {v(X+4*q,4)}, 0")
    def tw(conj):
        for q in range(4):
            t = TM + 8 * (q % 2)
            cmul_tw(p, D+8*q, D+8*q+4, TWC, TWS, t, t+4, conj)
            for r in range(4): p(f"v_cvt_pk_bf16_f32 v{X+4*q+r}, v{t+r}, v{t+4+r}")
    stage(FW, True)
    tw(True)
    stage(FW, False)
    p("s_waitcnt vmcnt(0)")
    for q in range(4):
        wc, wsn = TM + 8, TM + 12
        for r in range(4):
            if q % 2 == 0:
                p(f"v_lshlrev_b32 v{wc+r}, 16, v{WR+2*r+q//2}\nv_lshlrev_b32 v{wsn+r}, 16, v{WI+2*r+q//2}")
            else:
                p(f"v_and_b32 v{wc+r}, 0xffff0000, v{WR+2*r+q//2}\nv_and_b32 v{wsn+r}, 0xffff0000, v{WI+2*r+q//2}")
        cmul_tw(p, D+8*q, D+8*q+4, wc, wsn, TM, TM+4, False)
        for r in range(4): p(f"v_cvt_pk_bf16_f32 v{X+4*q+r}, v{TM+r}, v{TM+4+r}")
    stage(FW + 8, True)
    tw(False)
    stage(FW + 8, False)
    for r in range(4):
        for q in range(4): p(f"v_cvt_pk_bf16_f32 v{X+4*r+q}, v{D+8*q+r}, v{D+8*q+4+r}")
        p(f"buffer_store_dwordx4 {v(X+4*r,4)}, v1, s[48:51], s{8+r} offen")
    p("s_endpgm")

W_EXP = {0: [0,1,2,3,4,5,6,7,8, 512,516,520, 1024,1032, 1280,1288],
         1: [256,256,258,260,260,260,262,264,264, 768,772,776, 1536,1544, 1792,1800]}

def role_kgen(p, sid):
    p(f"""
    s_waitcnt lgkmcnt(0)
    s_and_b32 s4, s3, 1
    s_lshl_b32 s4, s4, 7
    s_lshl_b32 s5, s{sid}, 8
    s_add_u32 s4, s4, s5
    v_lshl_add_u32 v1, v0, 1, s4
    s_lshl_b32 s6, s{sid}, 1
    s_and_b32 s7, s6, 2
    s_and_b32 s6, s6, -4
    s_add_u32 s8, s{P_LDT}, s6
    s_addc_u32 s9, s{P_LDT+1}, 0
    s_add_u32 s10, s{P_DSK}, s6
    s_addc_u32 s11, s{P_DSK+1}, 0
    s_load_dword s12, s[8:9], 0
    s_load_dword s13, s[10:11], 0
    global_load_ushort v2, v1, s[{P_ARE}:{P_ARE+1}]
    global_load_ushort v3, v1, s[{P_AIM}:{P_AIM+1}]
    global_load_ushort v4, v1, s[{P_BRE}:{P_BRE+1}]
    global_load_ushort v5, v1, s[{P_BIM}:{P_BIM+1}]
    global_load_ushort v6, v1, s[{P_CRE}:{P_CRE+1}]
    global_load_ushort v7, v1, s[{P_CIM}:{P_CIM+1}]
    ; LDS write base: n*128 + (n%8)*16 (+16384 for the P waves)
    s_and_b32 s4, s3, 1
    s_lshl_b32 s4, s4, 13
    s_lshr_b32 s5, s3, 1
    s_lshl_b32 s5, s5, 14
    s_add_u32 s4, s4, s5
    v_and_b32 v8, 7, v0
    v_lshlrev_b32 v8, 4, v8
    v_lshl_add_u32 v8, v0, 7, v8
    v_add_u32 v8, s4, v8
    s_lshl_b32 s7, s7, 3
    s_waitcnt lgkmcnt(0)
    s_lshr_b32 s12, s12, s7
    s_lshl_b32 s12, s12, 16
    s_lshr_b32 s13, s13, s7
    s_lshl_b32 s13, s13, 16
    v_mov_b32 v9, {flit(LOG2E)}
    v_mul_f32 v10, s12, v9
    v_exp_f32 v10, v10
    v_cvt_pk_bf16_f32 v10, v10, v10
    v_and_b32 v10, 0xffff0000, v10
    s_waitcnt vmcnt(4)
    v_lshlrev_b32 v2, 16, v2
    v_lshlrev_b32 v3, 16, v3
    v_mul_f32 v2, v10, v2
    v_mul_f32 v3, v10, v3
    v_mul_f32 v2, v9, v2
    v_mul_f32 v3, 0.15915494, v3
    """)
    def epow(m, dst, conj):
        if m == 1: p("v_exp_f32 v12, v2\nv_fract_f32 v13, v3")
        else: p(f"v_mul_f32 v12, {flit(float(m))}, v2\nv_mul_f32 v13, {flit(float(m))}, v3\nv_exp_f32 v12, v12\nv_fract_f32 v13, v13")
        p(f"v_cos_f32 v14, v13\nv_sin_f32 v13, v13\nv_mul_f32 v{dst}, v12, v14")
        if conj: p(f"v_mul_f32 v{dst+1}, -v12, v13".replace("v_mul_f32", "v_mul_f32_e64"))
        else: p(f"v_mul_f32 v{dst+1}, v12, v13")
    def cmul(dst, z, e):
        p(f"v_pk_mul_f32 {v(dst,2)}, {v(z,2)}, {v(e,2)} op_sel:[0,0] op_sel_hi:[1,0]")
        p(f"v_pk_fma_f32 {v(dst,2)}, {v(z,2)}, {v(e,2)}, {v(dst,2)} op_sel:[1,1,0] op_sel_hi:[0,1,1] neg_lo:[1,0,0]")
    Z = 20
    PK = 88
    def emit(cols):
        k = 0
        for part in (0, 1):
            for q in range(4):
                pk = PK + 4 * (k % 2); k += 1
                for m in range(4):
                    p(f"v_cvt_pk_bf16_f32 v{pk+m}, v{cols[8*q+2*m]+part}, v{cols[8*q+2*m+1]+part}")
                chi = 4 * part + q
                if chi == 0: p(f"ds_write_b128 v8, {v(pk,4)}")
                else: p(f"v_xor_b32 v{96+k%2}, {16*chi}, v8\nds_write_b128 v{96+k%2}, {v(pk,4)}")
    p("s_cmp_ge_u32 s3, 2\ns_cbranch_scc1 L_kg_p")
    epow(1, 16, False); epow(256, 18, False)
    p(f"""
    s_waitcnt vmcnt(0)
    v_lshlrev_b32 v4, 16, v4
    v_lshlrev_b32 v5, 16, v5
    v_lshlrev_b32 v6, 16, v6
    v_lshlrev_b32 v7, 16, v7
    v_mul_f32 v4, v10, v4
    v_mul_f32 v5, v10, v5
    """)
    reg = {}
    nxt = [Z]
    def new(e):
        reg[e] = nxt[0]; nxt[0] += 2; return reg[e]
    cmul(new(0), 6, 4)
    for j in range(1, 9): cmul(new(j), reg[j-1], 16)
    for e in (0, 2, 4, 6, 8): cmul(new(256+e), reg[e], 18)
    for base in (512, 768):
        for e in (0, 4, 8): cmul(new(base+e), reg[base-256+e], 18)
    for base in (1024, 1280, 1536, 1792):
        for e in (0, 8): cmul(new(base+e), reg[base-256+e], 18)
    cols = []
    for rho in range(32):
        h = (rho >> 2) & 1; rg = 4 * (rho >> 3) + (rho & 3)
        cols.append(reg[W_EXP[h][rg]])
    emit(cols)
    p("s_branch L_kg_join")
    p.label("L_kg_p"); p.fence()
    epow(8, 16, True)
    p(f"v_mov_b32 v{Z}, 1.0\nv_mov_b32 v{Z+1}, 0\nv_mov_b32 v{Z+2}, v16\nv_mov_b32 v{Z+3}, v17")
    for c in range(2, 32): cmul(Z+2*c, Z+2*c-2, 16)
    emit([Z+2*c for c in range(32)])
    p.label("L_kg_join")
    p("s_waitcnt vmcnt(0) lgkmcnt(0)\ns_barrier\ns_cmp_lg_u32 s3, 0\ns_cbranch_scc1 L_kg_end")
    p.fence()
    srd(p, 44, P_WS, WS_R, 576 * RPITCH)
    p(f"""
    v_lshrrev_b32 v2, 5, v0
    v_bfe_u32 v3, v0, 3, 1
    v_lshl_add_u32 v2, v2, 2, v3
    v_bfe_u32 v3, v0, 2, 1
    v_bfe_u32 v4, v0, 4, 1
    v_lshlrev_b32 v4, 1, v4
    v_lshl_add_u32 v3, v3, 2, v4
    v_bfe_u32 v4, v0, 1, 1
    v_add_u32 v3, v3, v4
    v_and_b32 v4, 1, v0
    v_lshlrev_b32 v4, 3, v4
    v_xor_b32 v5, v3, v2
    v_lshl_add_u32 v5, v5, 4, v4
    v_lshl_add_u32 v6, v2, 7, v5
    v_add_u32 v2, 2, v2
    v_xor_b32 v5, v3, v2
    v_lshl_add_u32 v5, v5, 4, v4
    v_lshl_add_u32 v7, v2, 7, v5
    """)
    FB = 32
    D = 16
    def rdk(k):
        b = FB + 8 * (k % 4)
        p(f"ds_read_b64_tr_b16 {v(b,2)}, v6 offset:{1024*k}")
        p(f"ds_read_b64_tr_b16 {v(b+2,2)}, v7 offset:{1024*k}")
        p(f"ds_read_b64_tr_b16 {v(b+4,2)}, v6 offset:{16384+1024*k}")
        p(f"ds_read_b64_tr_b16 {v(b+6,2)}, v7 offset:{16384+1024*k}")
    for k in range(3): rdk(k)
    p(f"""
    s_mul_i32 s4, s{sid}, {RPITCH}
    v_and_b32 v8, 31, v0
    v_lshlrev_b32 v8, 4, v8
    v_sub_u32 v8, {4080 - 3072}, v8
    v_lshrrev_b32 v9, 5, v0
    v_lshlrev_b32 v9, 9, v9
    v_sub_u32 v10, v8, v9
    v_add_u32 v10, 2048, v10
    v_sub_u32 v11, v8, v9
    v_sub_u32 v11, v11, v9
    v_add_u32 v11, 512, v11
    v_and_b32 v12, 1, v0
    v_cmp_eq_u32 s[14:15], 0, v12
    v_cmp_eq_u32 vcc, 0, v0
    v_mov_b32 v13, s13
    v_cndmask_b32 v13, 0, v13, vcc
    s_add_u32 s5, s4, 4096
    """)
    for k in range(16):
        p(f"s_waitcnt lgkmcnt({min(8, 4*(15-k))})")
        b = FB + 8 * (k % 4)
        p(f"{MF32} {v(D,16)}, {v(b,4)}, {v(b+4,4)}, {'0' if k == 0 else v(D,16)}")
        if k + 3 < 16: rdk(k + 3)
    p(f"v_add_f32 v{D}, v{D}, v13")
    p(f"v_cndmask_b32 v14, v{D+13}, v{D+12}, s[14:15]\nv_cndmask_b32 v15, v{D+15}, v{D+14}, s[14:15]")
    E0 = [D+e for e in range(9)]
    a, b, c = D+9, D+10, D+11
    E2 = [a,a,a,b,b,b,c,c,c]
    E3a = [D+12]*4 + [14] + [D+13]*4
    E3b = [D+14]*4 + [15] + [D+15]*4
    k = 0
    for E, va, off in ((E0, 10, 1024), (E2, 10, 0), (E3a, 11, 512), (E3b, 11, 0)):
        for sh in (0, 1):
            pk = 32 + 4 * k; k += 1
            for m in range(4):
                p(f"v_cvt_pk_bf16_f32 v{pk+m}, v{E[7+sh-2*m]}, v{E[6+sh-2*m]}")
            p(f"buffer_store_dwordx4 {v(pk,4)}, v{va}, s[44:47], s{4+sh} offen offset:{off}")
    p(f"v_cvt_pk_bf16_f32 v2, v{D}, 0\nv_mov_b32 v3, 4096\ns_mov_b64 exec, 1\nbuffer_store_dword v2, v3, s[44:47], s5 offen")
    p.label("L_kg_end")
    p("s_endpgm")

def role_tr(p, sid, tag, src_srd, dst_srd, spitch, dpitch, sexpr):
    p("s_waitcnt lgkmcnt(0)")
    src_srd(p, 44); dst_srd(p, 48)
    p(f"""
    s_lshl_b32 s4, s{sid}, 3
    s_add_u32 s4, s4, s3
    s_add_u32 s5, s4, 4
    """)
    sexpr(p, 4, 6, 7); sexpr(p, 5, 8, 9)
    p(f"""
    v_lshrrev_b32 v1, 3, v0
    v_mul_u32_u24 v1, {spitch}, v1
    v_and_b32 v2, 7, v0
    v_lshl_add_u32 v1, v2, 4, v1
    s_lshl_b32 s10, s3, 12
    s_add_u32 s11, s6, {8*spitch}
    s_add_u32 s12, s8, {8*spitch}
    s_mov_b32 m0, s10
    buffer_load_dwordx4 v1, s[44:47], s6 offen lds
    s_add_u32 m0, s10, 1024
    buffer_load_dwordx4 v1, s[44:47], s11 offen lds
    s_add_u32 m0, s10, 2048
    buffer_load_dwordx4 v1, s[44:47], s8 offen lds
    s_add_u32 m0, s10, 3072
    buffer_load_dwordx4 v1, s[44:47], s12 offen lds
    v_bfe_u32 v3, v0, 2, 2
    v_lshlrev_b32 v3, 7, v3
    v_lshrrev_b32 v4, 4, v0
    v_lshl_add_u32 v3, v4, 5, v3
    v_and_b32 v4, 3, v0
    v_lshl_add_u32 v3, v4, 3, v3
    v_add_u32 v3, s10, v3
    v_mul_u32_u24 v4, {dpitch}, v0
    """)
    for n in range(2):
        p(f"s_waitcnt vmcnt({2 - 2*n + 2*n})" if n == 0 else "s_waitcnt vmcnt(2)")
        for m in range(4): p(f"ds_read_b64_tr_b16 {v(8+8*n+2*m,2)}, v3 offset:{2048*n + 512*m}")
        p("s_waitcnt lgkmcnt(0)")
        p(f"buffer_store_dwordx4 {v(8+8*n,4)}, v4, s[48:51], s{7+2*n} offen")
        p(f"buffer_store_dwordx4 {v(12+8*n,4)}, v4, s[48:51], s{7+2*n} offen offset:16")
    p("s_endpgm")

def role_ut(p, sid):
    def ex(p, t, a, b):
        p(f"""
        s_lshr_b32 s13, s{t}, 7
        s_and_b32 s14, s{t}, 127
        s_mul_i32 s{a}, s14, {16*1152}
        s_lshl_b32 s15, s13, 7
        s_add_u32 s{a}, s{a}, s15
        s_lshl_b32 s{b}, s13, 18
        s_lshl_b32 s15, s14, 5
        s_add_u32 s{b}, s{b}, s15
        """)
    role_tr(p, sid, "ut", lambda p, d: srd(p, d, P_U, 0, 2359296), lambda p, d: srd(p, d, P_WS, WS_UT, 576*4096), 1152, 4096, ex)

def role_yt(p, sid):
    def ex(p, t, a, b):
        p(f"""
        s_mul_i32 s13, s{t}, 1821
        s_lshr_b32 s13, s13, 16
        s_mul_i32 s14, s13, 36
        s_sub_u32 s14, s{t}, s14
        s_lshl_b32 s{a}, s14, 16
        s_lshl_b32 s15, s13, 7
        s_add_u32 s{a}, s{a}, s15
        s_mul_i32 s{b}, s13, {64*2304}
        s_lshl_b32 s15, s14, 5
        s_add_u32 s{b}, s{b}, s15
        """)
    role_tr(p, sid, "yt", lambda p, d: srd(p, d, P_WS, WS_YT, 576*4096), lambda p, d: srd(p, d, P_OUT, 0, 2048*2304), 4096, 2304, ex)

def role_conv(p, sid):
    CP = 4160
    UB = 4 * CP
    B = 16
    ACC = 80
    AF = 112
    p(f"""
    s_waitcnt lgkmcnt(0)
    s_mul_i32 s4, s{sid}, {RPITCH}
    s_add_u32 s4, s4, {WS_R}
    s_add_u32 s5, s4, 4096
    s_lshl_b32 s6, s{sid}, 12
    s_add_u32 s7, s6, {WS_UT}
    s_add_u32 s8, s6, {WS_YT}
    """)
    srd(p, 44, P_WS, "s4", 4096)
    srd(p, 48, P_WS, "s5", 4100)
    srd(p, 52, P_WS, "s7", 4096)
    srd(p, 56, P_WS, "s8", 4096)
    p(f"""
    s_lshl_b32 s9, s3, 10
    v_lshl_add_u32 v1, v0, 4, s9
    s_add_u32 m0, s9, {UB + 512}
    buffer_load_dwordx4 v1, s[52:55], 0 offen lds
    s_mov_b32 m0, s9
    buffer_load_dwordx4 v1, s[44:47], 0 offen lds
    s_add_u32 m0, s9, {CP}
    s_mov_b32 s10, 4
    s_mov_b32 s11, 8
    buffer_load_dwordx4 v1, s[48:51], s10 offen lds
    s_add_u32 m0, s9, {2*CP}
    buffer_load_dwordx4 v1, s[44:47], s10 offen lds
    s_add_u32 m0, s9, {3*CP}
    buffer_load_dwordx4 v1, s[48:51], s11 offen lds
    v_mov_b32 v2, 0
    v_mov_b32 v3, 0
    s_mul_i32 s12, s3, {CP}
    s_add_u32 s12, s12, 4096
    s_lshl_b32 s13, s3, 7
    s_add_u32 s13, s13, {UB - 64}
    v_lshlrev_b32 v4, 3, v0
    v_mov_b32 v5, s13
    v_mov_b32 v6, s12
    v_cmp_gt_u32 vcc, 8, v0
    v_cndmask_b32 v5, v5, v6, vcc
    v_add_u32 v4, v4, v5
    s_mov_b64 exec, 0xffffff
    ds_write_b64 v4, v[2:3]
    s_mov_b64 exec, -1
    v_and_b32 v2, 3, v0
    v_sub_u32 v2, 3, v2
    v_mul_u32_u24 v2, {CP}, v2
    v_lshrrev_b32 v3, 4, v0
    v_lshl_add_u32 v2, v3, 4, v2
    v_bfe_u32 v4, v0, 2, 2
    v_lshlrev_b32 v4, 3, v4
    v_sub_u32 v2, v2, v4
    s_lshl_b32 s12, s3, 6
    s_sub_u32 s13, {4056 - 3840}, s12
    v_add_u32 v2, s13, v2
    v_and_b32 v4, 15, v0
    v_lshlrev_b32 v5, 5, v4
    v_lshl_add_u32 v5, v3, 4, v5
    s_sub_u32 s13, {UB + 224}, s12
    v_add_u32 v3, s13, v5
    v_lshlrev_b32 v6, 4, v0
    v_lshrrev_b32 v7, 4, v0
    v_lshlrev_b32 v7, 3, v7
    v_lshl_add_u32 v7, v4, 5, v7
    s_waitcnt vmcnt(0) lgkmcnt(0)
    s_barrier
    """)
    def rda(m):
        a = AF + 4 * (m % 4)
        p(f"ds_read_b64 {v(a,2)}, v2 offset:{256*(15-m)}")
        p(f"ds_read_b64 {v(a+2,2)}, v2 offset:{256*(15-m)+8}")
    rda(0)
    for b in range(1, 16, 2): p(f"ds_read_b128 {v(B+4*b,4)}, v3 offset:{256*b}")
    rda(1)
    for T in range(8):
        p("s_waitcnt lgkmcnt(9)")
        p(f"{MF16} {v(ACC+4*T,4)}, {v(AF,4)}, {v(B+4*(2*T+1),4)}, 0")
        p(f"ds_read_b128 {v(B+8*T,4)}, v3 offset:{512*T}")
    rda(2); rda(3)
    for m in range(1, 16):
        p(f"s_waitcnt lgkmcnt({2 * (min(15, m + 2) - m)})")
        a = AF + 4 * (m % 4)
        for T in range(m // 2, 8):
            b = 2 * T - m + 1
            p(f"{MF16} {v(ACC+4*T,4)}, {v(a,4)}, {v(B+4*b,4)}, {v(ACC+4*T,4)}")
        if m + 3 < 16: rda(m + 3)
    p("s_barrier")
    p("v_add_u32 v8, s9, v6\ns_lshl_b32 s12, s3, 13\nv_add_u32 v9, s12, v6")
    for T in range(8): p(f"ds_write_b128 v8, {v(ACC+4*T,4)} offset:{4096*T}")
    p("s_waitcnt lgkmcnt(0)\ns_barrier")
    for q in range(8): p(f"ds_read_b128 {v(B+4*q,4)}, v9 offset:{1024*q}")
    for pi in range(2):
        b = B + 16 * pi
        p(f"s_waitcnt lgkmcnt({4 - 4*pi})")
        for h in (0, 2):
            p(f"v_pk_add_f32 {v(b+h,2)}, {v(b+h,2)}, {v(b+4+h,2)}")
            p(f"v_pk_add_f32 {v(b+8+h,2)}, {v(b+8+h,2)}, {v(b+12+h,2)}")
        for h in (0, 2):
            p(f"v_pk_add_f32 {v(b+h,2)}, {v(b+h,2)}, {v(b+8+h,2)}")
        p(f"v_cvt_pk_bf16_f32 v{b+4}, v{b}, v{b+1}\nv_cvt_pk_bf16_f32 v{b+5}, v{b+2}, v{b+3}")
        p(f"buffer_store_dwordx2 {v(b+4,2)}, v7, s[56:59], s9 offen offset:{512*pi}")
    p("s_endpgm")

def kernel(name, roles, nv=128):
    p = Prog()
    p.raw(f".globl {name}\n.p2align 8\n.type {name},@function\n{name}:")
    total = sum(c for c, _ in roles)
    p(f"s_cmp_ge_u32 s2, {total}\ns_cbranch_scc1 L_{name}_exit")
    prologue(p)
    base = 0
    for i, (c, fn) in enumerate(roles[:-1]):
        base += c
        p(f"s_cmp_lt_u32 s2, {base}\ns_cbranch_scc1 L_{name}_r{i}")
    p(f"s_branch L_{name}_r{len(roles)-1}")
    p.label(f"L_{name}_exit")
    p("s_endpgm")
    base = 0
    for i, (c, fn) in enumerate(roles):
        p.raw(".p2align 6")
        p.label(f"L_{name}_r{i}")
        p.hist = []
        p("s_nop 1")
        if base: p(f"s_sub_u32 s2, s2, {base}")
        fn(p, 2)
        base += c
    desc = f"""
.amdhsa_kernel {name}
  .amdhsa_next_free_vgpr {nv}
  .amdhsa_next_free_sgpr 64
  .amdhsa_accum_offset {nv}
  .amdhsa_group_segment_fixed_size 0
  .amdhsa_kernarg_size 120
  .amdhsa_user_sgpr_count 2
  .amdhsa_user_sgpr_kernarg_segment_ptr 1
  .amdhsa_system_sgpr_workgroup_id_x 1
.end_amdhsa_kernel
"""
    return p.text(), desc, total

def build():
    ks = [("s4gf_p1_kernel", [(576, role_kgen), (256, role_b1), (144, role_ut)], 32768),
          ("s4gf_p2_kernel", [(576, role_conv), (152, role_b2)], 32768),
          ("s4gf_p3_kernel", [(256, role_b3), (144, role_yt)], 16384)]
    ref = open("cdna_kernels/" + NAME + ".s.ref").read().split("\n")
    head = [l for l in ref if l.startswith(";") and "@launch" not in l and "Override launch" not in l and "grid=ceil" not in l]
    txt, descs, launches = "", "", ""
    for name, roles, lds in ks:
        t, d, total = kernel(name, roles)
        txt += t; descs += ".p2align 6" + d
        launches += f"; @launch kernel={name} grid=({total},1,1) block=(256,1,1) lds={lds}\n"
    return "\n".join(head) + "\n" + launches + '.amdgcn_target "amdgcn-amd-amdhsa--gfx950"\n.text\n' + txt + '.section .rodata,"a"\n' + descs

if __name__ == "__main__":
    out = sys.argv[1] if len(sys.argv) > 1 else "cdna_kernels/" + NAME + ".s"
    open(out, "w").write(build())
```

```python
import sys, os, math
from asmlib import Prog, v, s, flit

NAME = "concat_heads__ssm_conv_s4__spectral_gfnet__prompt"
WS_Y, WS_Z, WS_UT, WS_YT = 0x0, 0x300000, 0xB00000, 0xE00000
WS_FA1, WS_FA2, WS_FB1, WS_FB2 = 0x1100000, 0x1120000, 0x1130000, 0x1140000
YPITCH = int(os.environ.get('YPITCH', '10368'))
TP = int(os.environ.get('TP', '4224'))
P_U, P_ARE, P_AIM, P_BRE, P_BIM, P_CRE, P_CIM, P_LDT, P_DSK, P_X, P_WR, P_WI, P_OUT, P_DBG, P_WS = 16, 18, 20, 22, 24, 26, 28, 30, 32, 34, 36, 38, 40, 42, 44
SGN2 = "0x80008000"
LOG2E = 1.4426950408889634
SPIN = int(os.environ.get("SPIN", "200000"))
NB, NA = 256, 576
LDS_BYTES = 37376
STAMP = int(os.environ.get("STAMP", "0"))
OUTFLAG = os.environ.get("OUTFLAG", "")
WS_ST = 0x1800000
MF16 = "v_mfma_f32_16x16x32_bf16"
MF32 = "v_mfma_f32_32x32x16_bf16"
S_NONCE = 15
NST = 11
def stamp(p, i):
    if STAMP: p(f"s_memrealtime s[{80+2*i}:{81+2*i}]")
def endpgm(p):
    if STAMP:
        p("s_waitcnt vmcnt(0)")
        stamp(p, NST - 1)
        p(f"""
        s_mov_b64 exec, 1
        s_waitcnt lgkmcnt(0)
        s_lshl_b32 s78, s79, 2
        s_add_u32 s78, s78, s3
        s_lshl_b32 s78, s78, 6
        s_add_u32 s78, s78, {WS_ST}
        v_mov_b32 v0, s78
        """)
        for i in range(NST): p(f"v_mov_b32 v{4+i}, s{80+2*i}")
        p(f"global_store_dwordx4 v0, v[4:7], s[{P_WS}:{P_WS+1}]\nglobal_store_dwordx4 v0, v[8:11], s[{P_WS}:{P_WS+1}] offset:16\nglobal_store_dwordx4 v0, v[12:15], s[{P_WS}:{P_WS+1}] offset:32")
    p("s_endpgm")

def srd(p, d, base, off, size):
    if off == 0: p(f"s_mov_b32 s{d}, s{base}\ns_mov_b32 s{d+1}, s{base+1}")
    else: p(f"s_add_u32 s{d}, s{base}, {off}\ns_addc_u32 s{d+1}, s{base+1}, 0")
    p(f"s_mov_b32 s{d+2}, {size}\ns_mov_b32 s{d+3}, 0x20000")

def angles(p, x0, step, mults, tmp):
    for i, m in enumerate(mults):
        if m == 0: p(f"v_mov_b32 v{tmp+i}, v{x0}")
        elif m == 1: p(f"v_add_f32 v{tmp+i}, v{x0}, v{step}")
        else: p(f"v_fmamk_f32 v{tmp+i}, v{step}, {flit(float(m))}, v{x0}")
def cossin(p, ang, n, c, sn):
    for i in range(n): p(f"v_cos_f32 v{c+i}, v{ang+i}")
    for i in range(n): p(f"v_sin_f32 v{sn+i}, v{ang+i}")
def cmul_tw(p, re, im, c, sn, ore, oim, conj_tw):
    for h in (0, 2):
        p(f"v_pk_mul_f32 {v(ore+h,2)}, {v(re+h,2)}, {v(c+h,2)}")
        p(f"v_pk_mul_f32 {v(oim+h,2)}, {v(im+h,2)}, {v(c+h,2)}")
    n1 = "" if conj_tw else " neg_lo:[0,1,0] neg_hi:[0,1,0]"
    n2 = " neg_lo:[0,1,0] neg_hi:[0,1,0]" if conj_tw else ""
    for h in (0, 2):
        p(f"v_pk_fma_f32 {v(ore+h,2)}, {v(im+h,2)}, {v(sn+h,2)}, {v(ore+h,2)}{n1}")
        p(f"v_pk_fma_f32 {v(oim+h,2)}, {v(re+h,2)}, {v(sn+h,2)}, {v(oim+h,2)}{n2}")
def gfrag(p, sS2, dst, t0, inverse):
    p(f"""
    v_bfe_u32 v{t0}, v0, 1, 4
    v_cvt_f32_u32 v{t0}, v{t0}
    v_lshrrev_b32 v{t0+1}, 5, v0
    v_cvt_f32_u32 v{t0+1}, v{t0+1}
    v_and_b32 v{t0+2}, 1, v0
    v_cvt_f32_u32 v{t0+2}, v{t0+2}
    v_mul_f32 v{t0+2}, {flit(0.25)}, v{t0+2}
    v_cvt_f32_u32 v{t0+3}, s{sS2}
    v_mul_f32 v{t0+3}, {flit(1/2048)}, v{t0+3}
    """)
    if not inverse:
        p(f"v_fmac_f32 v{t0+3}, 0.5, v{t0+1}\nv_fma_f32 v{t0+2}, v{t0}, v{t0+3}, v{t0+2}\nv_mul_f32 v{t0+3}, {flit(0.125)}, v{t0}")
    else:
        p(f"v_fmac_f32 v{t0+3}, {flit(0.125)}, v{t0}\nv_sub_f32 v{t0+3}, 0, v{t0+3}\nv_mul_f32 v{t0+1}, 4.0, v{t0+1}\nv_fma_f32 v{t0+2}, v{t0+1}, v{t0+3}, v{t0+2}")
    angles(p, t0+2, t0+3, [0, 1, 2, 3], t0+4)
    cossin(p, t0+4, 4, t0+8, t0+12)
    for r in range(4): p(f"v_cvt_pk_bf16_f32 v{dst+r}, v{t0+8+r}, v{t0+12+r}")

def any_sentinel(p, regs, tmp):
    regs = list(regs)
    cur = regs[0]; rest = regs[1:]
    while rest:
        if len(rest) >= 2:
            p(f"v_max3_u32 v{tmp}, v{cur}, v{rest[0]}, v{rest[1]}"); rest = rest[2:]
        else:
            p(f"v_max_u32 v{tmp}, v{cur}, v{rest[0]}"); rest = rest[1:]
        cur = tmp
    p(f"v_cmp_eq_u32 vcc, -1, v{cur}")

LBL = [0]
def poll(p, issue, test, cnt=14):
    LBL[0] += 1
    a, b = f"L_poll{LBL[0]}", f"L_pok{LBL[0]}"
    p(f"s_mov_b32 s{cnt}, {SPIN}")
    p.label(a)
    issue()
    p(f"s_sub_u32 s{cnt}, s{cnt}, 1\ns_waitcnt vmcnt(0)")
    test()
    p(f"s_cbranch_vccz {b}\ns_cmp_lg_u32 s{cnt}, 0\ns_cbranch_scc1 {a}")
    p.label(b)

NOTAG = int(os.environ.get("NOTAG", "0"))
def tag_issue(p):
    if NOTAG: p(f"s_mov_b32 s{S_NONCE}, 0x1234567")
    else: p(f"s_load_dword s{S_NONCE}, s[{P_DBG}:{P_DBG+1}], 0")
def get_nonce(p, vt):
    LBL[0] += 1
    a, b = f"L_non{LBL[0]}", f"L_nok{LBL[0]}"
    p(f"s_cmp_lg_u32 s{S_NONCE}, 0\ns_cbranch_scc1 {b}")
    p(f"s_mov_b32 s14, {SPIN}\nv_mov_b32 v{vt}, 0")
    p.label(a)
    p(f"global_load_dword v{vt+1}, v{vt}, s[{P_DBG}:{P_DBG+1}] sc1\ns_sub_u32 s14, s14, 1\ns_waitcnt vmcnt(0)\nv_readfirstlane_b32 s{S_NONCE}, v{vt+1}")
    p(f"s_cmp_lg_u32 s{S_NONCE}, 0\ns_cbranch_scc1 {b}\ns_cmp_lg_u32 s14, 0\ns_cbranch_scc1 {a}")
    p.label(b)
def put_flag(p, soff, vt):
    p(f"""
    v_mov_b32 v{vt}, s{soff}
    v_mov_b32 v{vt+1}, s{S_NONCE}
    s_mov_b64 exec, 1
    global_store_dword v{vt}, v{vt+1}, s[{P_WS}:{P_WS+1}] sc0 sc1
    s_mov_b64 exec, -1
    """)

def role_b(p):
    sid = 2
    XB, EB, ST, OUTB, E3, WB = 0, 9216, 0, 0, 19456, 19456
    vc, vg, fc, fg = 2, 3, 4, 5
    C18, S18, TWC, TWS, B2 = 8, 12, 16, 24, 32
    G, T = 64, 68
    SX, SY, SZ, SWR, SWI, SO = 48, 52, 56, 60, 64, 68
    p("s_setprio 3\ns_waitcnt lgkmcnt(0)")
    srd(p, SX, P_X, 0, 2359296)
    p(f"""
    s_mul_i32 s4, s3, 589824
    s_mul_i32 s5, s{sid}, 1152
    s_add_u32 s4, s4, s5
    s_add_u32 s5, s4, 294912
    s_mul_i32 s6, s3, 2304
    v_lshlrev_b32 v1, 4, v0
    s_mov_b32 m0, s6
    buffer_load_dwordx4 v1, s[{SX}:{SX+3}], s4 offen lds
    s_mov_b64 exec, 0xff
    buffer_load_dwordx4 v1, s[{SX}:{SX+3}], s4 offen offset:1024 lds
    s_add_u32 s7, s6, 1152
    s_mov_b32 m0, s7
    buffer_load_dwordx4 v1, s[{SX}:{SX+3}], s5 offen offset:1024 lds
    s_mov_b64 exec, -1
    buffer_load_dwordx4 v1, s[{SX}:{SX+3}], s5 offen lds
    s_or_b32 s7, s{sid}, s3
    s_cmp_lg_u32 s7, 0
    s_cbranch_scc1 L_b_notag
    s_or_b32 s12, s12, 1
    v_mov_b32 v6, 0
    v_mov_b32 v7, s12
    global_store_dword v6, v7, s[{P_DBG}:{P_DBG+1}] sc0 sc1
    L_b_notag:
    """)
    srd(p, SY, P_WS, WS_Y, 256 * YPITCH)
    srd(p, SZ, P_WS, WS_Z, 256 * YPITCH)
    def clear_tiles(sr, tag, vd):
        for so, off in ((76, 0), (76, 512), (46, 512)):
            p(f"buffer_store_dwordx4 {v(vd,4)}, v1, s[{sr}:{sr+3}], s{so} offen offset:{off} sc1")
    p(f"""
    v_mov_b32 v8, -1
    v_mov_b32 v9, -1
    v_mov_b32 v10, -1
    v_mov_b32 v11, -1
    s_mul_i32 s9, s{sid}, {YPITCH}
    s_mul_i32 s7, s3, 2560
    s_lshl_b32 s8, s3, 7
    s_add_u32 s76, s9, s8
    s_cmp_lt_u32 s3, 2
    s_cselect_b32 s46, 512, 0
    s_add_u32 s46, s46, s76
    v_lshrrev_b32 v6, 3, v0
    v_mul_u32_u24 v6, 1280, v6
    v_and_b32 v1, 0x70, v1
    v_add_u32 v1, v6, v1
    s_lshl_b32 s77, s3, 8
    s_add_u32 s77, s77, s{sid}
    s_lshl_b32 s77, s77, 5
    s_add_u32 s77, s77, {WS_FB1}
    """)
    clear_tiles(SY, "y", 8)
    srd(p, SWR, P_WR, 0, 2048 * 578 + 2)
    srd(p, SWI, P_WI, 0, 2048 * 578 + 2)
    p(f"""
    v_bfe_u32 v6, v0, 4, 2
    v_mul_u32_u24 v6, {8*578}, v6
    v_and_b32 v7, 15, v0
    v_lshl_add_u32 v6, v7, 6, v6
    v_and_b32 v6, -4, v6
    s_lshr_b32 s4, s{sid}, 3
    s_lshl_b32 s4, s4, 1
    s_and_b32 s5, s3, 1
    s_add_u32 s4, s4, s5
    s_lshl_b32 s4, s4, 5
    s_and_b32 s5, s{sid}, 7
    s_add_u32 s4, s4, s5
    s_mul_i32 s4, s4, 578
    s_and_b32 s4, s4, -4
    s_lshl_b32 s5, s3, 8
    s_add_u32 m0, s5, 35840
    s_mov_b32 exec_lo, 0x03ff03ff
    s_mov_b32 exec_hi, 0x03ff03ff
    s_cmp_ge_u32 s3, 2
    s_cbranch_scc1 L_b_pfi
    buffer_load_dword v6, s[{SWR}:{SWR+3}], s4 offen lds
    s_branch L_b_pfd
    L_b_pfi:
    buffer_load_dword v6, s[{SWI}:{SWI+3}], s4 offen lds
    L_b_pfd:
    s_mov_b64 exec, -1
    """)
    p(f"v_and_b32 v{vc}, 15, v0\nv_lshrrev_b32 v{vg}, 4, v0\nv_cvt_f32_u32 v{fc}, v{vc}\nv_cvt_f32_u32 v{fg}, v{vg}")
    p(f"v_mul_f32 v{T}, {flit(1/18)}, v{fc}\nv_mul_f32 v{T+1}, {flit(8.0)}, v{fg}\nv_mul_f32 v{T+1}, v{T+1}, v{T}")
    angles(p, T+1, T, list(range(8)), T+2)
    cossin(p, T+2, 8, T+10, T+18)
    for e in range(4):
        p(f"v_cvt_pk_bf16_f32 v{C18+e}, v{T+10+2*e}, v{T+11+2*e}")
        p(f"v_cvt_pk_bf16_f32 v{S18+e}, -v{T+18+2*e}, -v{T+19+2*e}")
    p("s_mov_b32 exec_lo, 0")
    for e in (1, 2, 3): p(f"v_mov_b32 v{C18+e}, 0\nv_mov_b32 v{S18+e}, 0")
    p("s_mov_b32 exec_hi, 0xffff0000")
    p(f"v_mov_b32 v{C18}, 0\nv_mov_b32 v{S18}, 0")
    p("s_mov_b64 exec, -1")
    p(f"v_mul_f32 v{T}, {flit(1/576)}, v{fc}\nv_mul_f32 v{T+1}, 4.0, v{fg}\nv_mul_f32 v{T+1}, v{T+1}, v{T}")
    angles(p, T+1, T, [0, 1, 2, 3, 16, 17, 18, 19], T+2)
    cossin(p, T+2, 8, TWC, TWS)
    p(f"v_mul_f32 v{T}, {flit(1/32)}, v{fc}\nv_mul_f32 v{T+1}, 4.0, v{fg}\nv_mul_f32 v{T+1}, v{T+1}, v{T}")
    angles(p, T+1, T, [0, 1, 2, 3], T+2)
    cossin(p, T+2, 4, T+6, T+10)
    def b2(part, t, tau): return B2 + 4 * (part * 4 + t * 2 + tau)
    for r in range(4):
        p(f"v_cvt_pk_bf16_f32 v{b2(0,0,0)+r}, v{T+6+r}, v{T+10+r}")
        p(f"v_cvt_pk_bf16_f32 v{b2(1,0,0)+r}, -v{T+10+r}, v{T+6+r}")
    p(f"v_and_b32 v{T}, 1, v0\nv_mul_u32_u24 v{T}, 0x8000, v{T}\nv_lshl_or_b32 v{T}, v{T}, 16, v{T}")
    for part in (0, 1):
        for r in range(4):
            flip = (r % 2 == 1) if part == 0 else (r % 2 == 0)
            if flip: p(f"v_xor_b32 v{b2(part,0,1)+r}, {SGN2}, v{b2(part,0,0)+r}")
            else: p(f"v_mov_b32 v{b2(part,0,1)+r}, v{b2(part,0,0)+r}")
        for tau in (0, 1):
            for r in range(4):
                p(f"v_xor_b32 v{b2(part,1,tau)+r}, v{T}, v{b2(part,0,tau)+r}")
    gfrag(p, sid, G, T, False)
    AD = 6
    A, D, TM, EA = 68, 84, 116, 124
    p(f"""
    v_mov_b32 v{TM+2}, 0
    v_bfe_u32 v{T}, v0, 2, 2
    v_lshl_add_u32 v{T}, v{vg}, 3, v{T}
    v_add_u32 v{T+1}, 4, v{T}
    v_min_u32 v{T}, 17, v{T}
    v_min_u32 v{T+1}, 17, v{T+1}
    v_and_b32 v{T+2}, 3, v0
    v_lshlrev_b32 v{T+2}, 3, v{T+2}
    v_add_u32 v{T+2}, s6, v{T+2}
    v_lshl_add_u32 v{AD}, v{T}, 6, v{T+2}
    v_lshl_add_u32 v{AD+1}, v{T+1}, 6, v{T+2}
    s_add_u32 s7, s7, {EB}
    v_mul_u32_u24 v{EA}, 18, v{vc}
    v_lshl_add_u32 v{EA}, v{vg}, 2, v{EA}
    v_sub_u32 v{EA+1}, 285, v{EA}
    v_lshl_add_u32 v{EA}, v{EA}, 2, s7
    v_lshl_add_u32 v{EA+1}, v{EA+1}, 2, s7
    v_and_b32 v{EA+3}, 31, v0
    v_lshlrev_b32 v{EA+3}, 2, v{EA+3}
    v_lshrrev_b32 v{TM}, 5, v0
    v_mul_u32_u24 v{TM+1}, 1280, v{TM}
    v_add3_u32 v{TM+1}, v{TM+1}, v{EA+3}, s7
    s_mov_b32 exec_lo, -2
    s_mov_b32 exec_hi, -2
    ds_write_b32 v{TM+1}, v{TM+2} offset:1152
    s_mov_b64 exec, -1
    s_lshl_b32 s8, s3, 7
    v_add_u32 v{EA+3}, s8, v{EA+3}
    v_mul_u32_u24 v{TM+1}, 5120, v{TM}
    v_add_u32 v{EA+2}, v{TM+1}, v{EA+3}
    v_add_u32 v{EA+2}, {EB}, v{EA+2}
    v_mul_u32_u24 v{TM+1}, 2560, v{TM}
    v_add_u32 v{EA+3}, v{TM+1}, v{EA+3}
    s_add_u32 s10, s9, 5120
    """)
    stamp(p, 1)
    p("s_waitcnt vmcnt(4)")
    stamp(p, 6)
    tag_issue(p)
    for row in (0, 1):
        for t in (0, 1):
            a = A + 4 * (2 * row + t)
            p(f"ds_read_b64_tr_b16 {v(a,2)}, v{AD} offset:{XB + 1152*row + 32*t}")
            p(f"ds_read_b64_tr_b16 {v(a+2,2)}, v{AD+1} offset:{XB + 1152*row + 32*t}")
    for i in range(4):
        a = A + 4 * i
        p(f"s_waitcnt lgkmcnt({6 - 2*i})")
        p(f"{MF16} {v(D+8*i,4)}, {v(a,4)}, {v(C18,4)}, 0")
        p(f"{MF16} {v(D+8*i+4,4)}, {v(a,4)}, {v(S18,4)}, 0")
    for row in (0, 1):
        for t in (0, 1):
            i = 2 * row + t
            cmul_tw(p, D+8*i, D+8*i+4, TWC+4*t, TWS+4*t, TM, TM+4, True)
            for r in range(4): p(f"v_cvt_pk_bf16_f32 v{A+4*i+r}, v{TM+r}, v{TM+4+r}")
    for row in (0, 1):
        for tau in (0, 1):
            for part in (0, 1):
                d = D + 8 * (2 * row + tau) + 4 * part
                p(f"{MF16} {v(d,4)}, {v(A+8*row,4)}, {v(b2(part,0,tau),4)}, 0")
                p(f"{MF16} {v(d,4)}, {v(A+8*row+4,4)}, {v(b2(part,1,tau),4)}, {v(d,4)}")
    for i in range(4):
        for r in range(4): p(f"v_cvt_pk_bf16_f32 v{A+4*i+r}, v{D+8*i+r}, v{D+8*i+4+r}")
    for pair, ex in ((0, "0xffff"), (1, "0")):
        p(f"s_mov_b32 exec_hi, {ex}")
        for row in (0, 1):
            for tau in (0, 1):
                i = 2 * row + tau
                r0 = 2 * pair
                o0, o1 = (r0, r0 + 1) if tau == 0 else (3 - r0, 2 - r0)
                if row == 0:
                    p(f"ds_write2_b32 v{EA+tau}, v{A+4*i+r0}, v{A+4*i+r0+1} offset0:{o0} offset1:{o1}")
                else:
                    p(f"ds_write_b32 v{EA+tau}, v{A+4*i+r0} offset:{1280+4*o0}")
                    p(f"ds_write_b32 v{EA+tau}, v{A+4*i+r0+1} offset:{1280+4*o1}")
    p("s_mov_b64 exec, -1\ns_waitcnt vmcnt(1) lgkmcnt(0)")
    get_nonce(p, TM)
    put_flag(p, 77, TM)
    stamp(p, 7)
    p("s_barrier")
    for n in range(3):
        a = A + 4 * n
        p(f"ds_read2st64_b32 {v(a,2)}, v{EA+2} offset0:{2*n} offset1:{2*n+5}")
        p(f"ds_read2st64_b32 {v(a+2,2)}, v{EA+2} offset0:{2*n+10} offset1:{2*n+15}")
    p("s_waitcnt lgkmcnt(4)")
    p(f"{MF32} {v(D,16)}, {v(G,4)}, {v(A,4)}, 0")
    p("s_waitcnt lgkmcnt(2)")
    p(f"{MF32} {v(D+16,16)}, {v(G,4)}, {v(A+4,4)}, 0")
    p("s_waitcnt lgkmcnt(0)")
    p(f"{MF32} {v(32,16)}, {v(G,4)}, {v(A+8,4)}, 0")
    p(f"v_add_u32 v6, s8, v1")
    for n, d, tm in ((0, D, TM), (1, D+16, TM+4), (2, 32, A)):
        for m in range(4): p(f"v_cvt_pk_bf16_f32 v{tm+m}, v{d+2*m}, v{d+2*m+1}")
        if n == 2:
            p(f"s_waitcnt lgkmcnt(5)\nbuffer_store_dwordx4 {v(48,4)}, v1, s[{SY}:{SY+3}], s76 offen sc1")
            p(f"s_waitcnt lgkmcnt(0)\nbuffer_store_dwordx4 {v(52,4)}, v1, s[{SY}:{SY+3}], s76 offen offset:512 sc1")
            p("s_cmp_ge_u32 s3, 2\ns_cbranch_scc1 L_b1_end")
        for m in range(4):
            p(f"ds_write_b32 v{EA+3}, v{tm+m} offset:{EB + 5120*(m//2) + 1280*(m%2) + 512*n}")
        p(f"ds_read_b128 {v(48+4*n,4)}, v6 offset:{EB + 512*n}")
    p(f"s_waitcnt lgkmcnt(0)\nbuffer_store_dwordx4 {v(56,4)}, v1, s[{SY}:{SY+3}], s76 offen offset:1024 sc1")
    p.label("L_b1_end")
    stamp(p, 2)
    p("v_mov_b32 v8, -1\nv_mov_b32 v9, -1\nv_mov_b32 v10, -1\nv_mov_b32 v11, -1")
    clear_tiles(SZ, "z", 8)
    p(f"s_add_u32 s77, s77, {WS_FB2 - WS_FB1}")
    p(f"s_cmp_ge_u32 s{sid}, 152\ns_cbranch_scc1 L_b3")
    FW, TWC2, TWS2, X, WR, WI, D2, TM2 = 8, 24, 28, 32, 48, 56, 64, 96
    T = 64
    p("s_barrier")
    p(f"""
    s_and_b32 s4, s{sid}, 7
    s_lshr_b32 s5, s{sid}, 3
    v_lshrrev_b32 v6, 2, v0
    v_and_b32 v7, 3, v0
    v_lshl_add_u32 v112, v6, 4, v7
    s_lshl_b32 s6, s3, 2
    s_bfe_u32 s7, s{sid}, 0x20004
    s_lshl_b32 s7, s7, 8
    s_add_u32 s6, s6, s7
    v_add_u32 v112, s6, v112
    v_lshlrev_b32 v112, 5, v112
    v_add_u32 v112, {WS_FB1}, v112
    global_load_dword v113, v112, s[{P_WS}:{P_WS+1}] sc1
    v_lshrrev_b32 v114, 1, v0
    v_mul_u32_u24 v114, {8*578}, v114
    v_and_b32 v115, 1, v0
    v_lshl_add_u32 v114, v115, 4, v114
    s_and_b32 s72, s{sid}, 7
    s_mul_i32 s72, s72, 578
    s_lshr_b32 s73, s{sid}, 3
    s_lshl_b32 s73, s73, 5
    s_add_u32 s72, s72, s73
    s_mul_i32 s73, s3, {64*8*578}
    s_add_u32 s72, s72, s73
    s_add_u32 s73, s72, {32*8*578}
    s_lshl_b32 s11, s3, 11
    s_add_u32 m0, s11, {WB}
    buffer_load_dwordx4 v114, s[{SWR}:{SWR+3}], s72 offen lds
    s_add_u32 m0, s11, {WB+1024}
    buffer_load_dwordx4 v114, s[{SWR}:{SWR+3}], s73 offen lds
    s_add_u32 m0, s11, {WB+8192}
    buffer_load_dwordx4 v114, s[{SWI}:{SWI+3}], s72 offen lds
    s_add_u32 m0, s11, {WB+8192+1024}
    buffer_load_dwordx4 v114, s[{SWI}:{SWI+3}], s73 offen lds
    v_lshl_add_u32 v114, v{vg}, 6, v{vc}
    v_lshlrev_b32 v114, 5, v114
    s_lshl_b32 s7, s3, 3
    v_add_u32 v114, s7, v114
    v_mul_u32_u24 v1, {16*YPITCH}, v6
    v_lshl_add_u32 v1, v7, 4, v1
    s_mul_i32 s6, s4, 1280
    s_lshl_b32 s7, s5, 6
    s_add_u32 s6, s6, s7
    s_mul_i32 s7, s3, {4*YPITCH}
    s_add_u32 s8, s6, s7
    s_add_u32 s9, s8, {YPITCH}
    s_add_u32 s10, s8, {2*YPITCH}
    s_add_u32 s11, s8, {3*YPITCH}
    s_mul_i32 s6, s3, 4160
    v_lshl_add_u32 v6, v0, 4, s6
    v_mul_u32_u24 v7, 1040, v{vc}
    v_lshl_add_u32 v7, v{vg}, 8, v7
    s_lshl_b32 s6, s3, 4
    v_add_u32 v7, s6, v7
    v_mul_f32 v{fg}, 4.0, v{fg}
    v_mul_f32 v{T}, {flit(1/16)}, v{fc}
    v_mul_f32 v{T+1}, v{fg}, v{T}
    """)
    angles(p, T+1, T, [0, 1, 2, 3], T+2)
    cossin(p, T+2, 4, T+6, T+10)
    for r in range(4):
        p(f"v_cvt_pk_bf16_f32 v{FW+r}, v{T+6+r}, v{T+10+r}")
        p(f"v_cvt_pk_bf16_f32 v{FW+4+r}, -v{T+10+r}, v{T+6+r}")
        p(f"v_cvt_pk_bf16_f32 v{FW+8+r}, v{T+6+r}, -v{T+10+r}")
        p(f"v_cvt_pk_bf16_f32 v{FW+12+r}, v{T+10+r}, v{T+6+r}")
    p(f"v_mul_f32 v{T}, {flit(1/256)}, v{fc}\nv_mul_f32 v{T+1}, v{fg}, v{T}")
    angles(p, T+1, T, [0, 1, 2, 3], T+2)
    cossin(p, T+2, 4, TWC2, TWS2)
    p(f"v_mul_f32 v{fg}, {flit(0.25)}, v{fg}")
    p("s_waitcnt vmcnt(4)")
    stamp(p, 8)
    put_flag(p, 77, 116)
    p(f"v_cmp_ne_u32 vcc, s{S_NONCE}, v113\ns_cbranch_vccz L_b2_flagok")
    poll(p, lambda: p(f"global_load_dword v113, v112, s[{P_WS}:{P_WS+1}] sc1"), lambda: p(f"v_cmp_ne_u32 vcc, s{S_NONCE}, v113"))
    p.label("L_b2_flagok")
    stamp(p, 9)
    def ldY():
        for i in range(4): p(f"buffer_load_dwordx4 {v(X+4*i,4)}, v1, s[{SY}:{SY+3}], s{8+i} offen sc1")
    poll(p, ldY, lambda: any_sentinel(p, range(X, X+16), 113))
    stamp(p, 3)
    p(f"v_add_u32 v112, {WS_FB2 - WS_FB1}, v112\nglobal_load_dword v113, v112, s[{P_WS}:{P_WS+1}] sc1")
    for i in range(4): p(f"ds_write_b128 v6, {v(X+4*i,4)} offset:{ST + 1040*i}")
    p("s_waitcnt lgkmcnt(0)\ns_barrier")
    for r in range(4): p(f"ds_read_b128 {v(X+4*r,4)}, v7 offset:{ST + 64*r}")
    for r in range(4):
        p(f"ds_read_b64 {v(WR+2*r,2)}, v114 offset:{WB + 512*r}")
        p(f"ds_read_b64 {v(WI+2*r,2)}, v114 offset:{WB + 8192 + 512*r}")
    p("s_waitcnt lgkmcnt(8)")
    for i in range(4):
        for j in range(i + 1, 4): p(f"v_swap_b32 v{X+4*i+j}, v{X+4*j+i}")
    def stage(mat, data_is_A):
        for q in range(4):
            for part in (0, 1):
                d = D2 + 8 * q + 4 * part
                if data_is_A: p(f"{MF16} {v(d,4)}, {v(X+4*q,4)}, {v(mat+4*part,4)}, 0")
                else: p(f"{MF16} {v(d,4)}, {v(mat+4*part,4)}, {v(X+4*q,4)}, 0")
    def tw(conj):
        for q in range(4):
            t = TM2 + 8 * (q % 2)
            cmul_tw(p, D2+8*q, D2+8*q+4, TWC2, TWS2, t, t+4, conj)
            for r in range(4): p(f"v_cvt_pk_bf16_f32 v{X+4*q+r}, v{t+r}, v{t+4+r}")
    stage(FW, True)
    p("s_waitcnt lgkmcnt(0)\ns_barrier")
    tw(True); stage(FW, False)
    for q in range(4):
        wc, wsn = TM2 + 8, TM2 + 12
        for r in range(4):
            if q % 2 == 0: p(f"v_lshlrev_b32 v{wc+r}, 16, v{WR+2*r+q//2}\nv_lshlrev_b32 v{wsn+r}, 16, v{WI+2*r+q//2}")
            else: p(f"v_and_b32 v{wc+r}, 0xffff0000, v{WR+2*r+q//2}\nv_and_b32 v{wsn+r}, 0xffff0000, v{WI+2*r+q//2}")
        cmul_tw(p, D2+8*q, D2+8*q+4, wc, wsn, TM2, TM2+4, False)
        for r in range(4): p(f"v_cvt_pk_bf16_f32 v{X+4*q+r}, v{TM2+r}, v{TM2+4+r}")
    stage(FW + 8, True); tw(False); stage(FW + 8, False)
    for r in range(4):
        for q in range(4): p(f"v_cvt_pk_bf16_f32 v{X+4*r+q}, v{D2+8*q+r}, v{D2+8*q+4+r}")
        p(f"ds_write_b128 v7, {v(X+4*r,4)} offset:{OUTB + 64*r}")
    p("s_waitcnt lgkmcnt(0)\ns_barrier")
    for i in range(4): p(f"ds_read_b128 {v(X+4*i,4)}, v6 offset:{OUTB + 1040*i}")
    p(f"s_waitcnt vmcnt(0)\nv_cmp_ne_u32 vcc, s{S_NONCE}, v113\ns_cbranch_vccz L_b2_flag2ok")
    poll(p, lambda: p(f"global_load_dword v113, v112, s[{P_WS}:{P_WS+1}] sc1"), lambda: p(f"v_cmp_ne_u32 vcc, s{S_NONCE}, v113"))
    p.label("L_b2_flag2ok")
    for i in range(4):
        p(f"s_waitcnt lgkmcnt({3-i})")
        p(f"buffer_store_dwordx4 {v(X+4*i,4)}, v1, s[{SZ}:{SZ+3}], s{8+i} offen sc1")
    p.label("L_b3")
    p.hist = []
    stamp(p, 4)
    B2, TWC, TWS, BL, G, ZD, T = 8, 40, 48, 56, 64, 68, 84
    srd(p, SO, P_OUT, 0, 2048 * 2304)
    p(f"""
    v_and_b32 v6, 31, v0
    v_lshlrev_b32 v6, 2, v6
    s_lshl_b32 s8, s3, 7
    v_add_u32 v6, s8, v6
    v_lshrrev_b32 v7, 5, v0
    v_lshrrev_b32 v80, 3, v0
    v_mul_u32_u24 v80, 1280, v80
    v_and_b32 v1, 7, v0
    v_lshl_add_u32 v1, v1, 4, v80
    s_cmp_eq_u32 s3, 1
    s_cselect_b64 vcc, -1, 0
    v_cndmask_b32 v80, v1, v80, vcc
    v_add_u32 v83, s8, v1
    v_mul_u32_u24 v81, 5120, v7
    v_add_u32 v81, v81, v6
    v_add_u32 v81, {E3}, v81
    """)
    gfrag(p, sid, G, T, True)
    FA = T
    p(f"v_and_b32 v{T+1}, 12, v{vc}\nv_add_u32 v{T+1}, v{T+1}, v{vc}\nv_cvt_f32_u32 v{FA}, v{T+1}\nv_mul_f32 v{T+1}, 4.0, v{fg}")
    def b3(part, c, t): return B2 + 4 * (part * 4 + c * 2 + t)
    p(f"v_and_b32 v{T+2}, 1, v0\nv_mul_u32_u24 v{T+2}, 0x8000, v{T+2}\nv_lshl_or_b32 v{T+2}, v{T+2}, 16, v{T+2}\nv_xor_b32 v{T+2}, 0x80000000, v{T+2}")
    for t in (0, 1):
        if t == 1: p(f"v_add_f32 v{FA}, 4.0, v{FA}")
        p(f"v_mul_f32 v{T+3}, {flit(1/32)}, v{FA}\nv_mul_f32 v{T+4}, v{T+1}, v{T+3}")
        angles(p, T+4, T+3, [0, 1, 2, 3], T+5)
        cossin(p, T+5, 4, T+9, T+13)
        for r in range(4):
            p(f"v_cvt_pk_bf16_f32 v{b3(0,0,t)+r}, v{T+9+r}, -v{T+13+r}")
            p(f"v_cvt_pk_bf16_f32 v{b3(1,0,t)+r}, v{T+13+r}, v{T+9+r}")
        for r in range(4):
            p(f"v_xor_b32 v{b3(0,1,t)+r}, v{T+2}, v{b3(0,0,t)+r}")
            p(f"v_xor_b32 v{b3(1,1,t)+r}, v{T+2}, v{b3(1,0,t)+r}")
        p(f"v_mul_f32 v{T+3}, {flit(1/576)}, v{FA}\nv_mul_f32 v{T+4}, v{T+1}, v{T+3}")
        angles(p, T+4, T+3, [0, 1, 2, 3], T+5)
        cossin(p, T+5, 4, TWC+4*t, TWS+4*t)
    sc = 1.0 / (2048 * 576)
    WG = T + 17
    for r in range(4): p(f"v_mov_b32 v{WG+r}, {flit(2*sc)}")
    p(f"s_mov_b64 exec, 0xffff\nv_mov_b32 v{WG}, {flit(sc)}")
    p(f"s_mov_b32 exec_lo, 0\ns_mov_b32 exec_hi, -1\nv_mov_b32 v{WG+1}, {flit(sc)}\nv_mov_b32 v{WG+2}, 0\nv_mov_b32 v{WG+3}, 0")
    p(f"s_mov_b32 exec_hi, 0xffff0000\nv_mov_b32 v{WG}, 0\nv_mov_b32 v{WG+1}, 0\ns_mov_b64 exec, -1")
    for bt in (0, 1):
        if bt == 0: p(f"v_mul_f32 v{T+3}, {flit(1/18)}, v{fc}")
        else: p(f"v_add_f32 v{T+3}, {flit(16/18)}, v{T+3}")
        p(f"v_mul_f32 v{T+4}, v{T+1}, v{T+3}")
        angles(p, T+4, T+3, [0, 1, 2, 3], T+5)
        cossin(p, T+5, 4, T+9, T+13)
        for r in range(4):
            p(f"v_mul_f32 v{T+9+r}, v{WG+r}, v{T+9+r}\nv_mul_f32 v{T+13+r}, v{WG+r}, v{T+13+r}")
            p(f"v_cvt_pk_bf16_f32 v{BL+4*bt+r}, v{T+9+r}, -v{T+13+r}")
    EA = 124
    p(f"""
    v_mul_u32_u24 v{EA}, 2560, v7
    v_add_u32 v{EA}, v{EA}, v6
    v_min_u32 v{T}, 9, v{vc}
    v_mul_u32_u24 v{T+1}, 72, v{vg}
    v_add_u32 v{T}, v{T}, v{T+1}
    s_mul_i32 s7, s3, 2560
    s_add_u32 s7, s7, {E3}
    v_lshl_add_u32 v{EA+1}, v{T}, 2, s7
    v_sub_u32 v{T}, {288-54}, v{T}
    v_lshl_add_u32 v{EA+2}, v{T}, 2, s7
    v_lshlrev_b32 v{EA+3}, 6, v{vc}
    v_lshl_add_u32 v{EA+3}, v{vg}, 4, v{EA+3}
    s_mul_i32 s12, s3, {2*256*2304}
    s_mul_i32 s13, s{sid}, 2304
    s_add_u32 s12, s12, s13
    s_add_u32 s13, s12, {256*2304}
    """)
    p(f"s_cmp_lt_u32 s{sid}, 152\ns_cbranch_scc1 L_b3_f2\ns_waitcnt vmcnt(0)")
    put_flag(p, 77, 84)
    p.label("L_b3_f2")
    D, TM = 84, 116
    poll(p, lambda: p(f"buffer_load_dwordx4 {v(D,4)}, v1, s[{SZ}:{SZ+3}], s76 offen sc1"), lambda: p(f"v_cmp_eq_u32 vcc, -1, v{D}"))
    def ldZ():
        p(f"buffer_load_dwordx4 {v(D,4)}, v1, s[{SZ}:{SZ+3}], s76 offen sc1")
        p(f"buffer_load_dwordx4 {v(D+4,4)}, v1, s[{SZ}:{SZ+3}], s76 offen offset:512 sc1")
        p(f"buffer_load_dwordx4 {v(D+8,4)}, v80, s[{SZ}:{SZ+3}], s46 offen offset:512 sc1")
    poll(p, ldZ, lambda: any_sentinel(p, range(D, D+12), 82))
    stamp(p, 5)
    p(f"ds_write_b128 v83, {v(D,4)} offset:{E3}\nds_write_b128 v83, {v(D+4,4)} offset:{E3+512}")
    p("s_cmp_ge_u32 s3, 2\ns_cbranch_scc1 L_b3_no3")
    p(f"ds_write_b128 v83, {v(D+8,4)} offset:{E3+1024}")
    p.label("L_b3_no3")
    for n in range(3):
        a = ZD + 4 * n
        p(f"ds_read2st64_b32 {v(a,2)}, v81 offset0:{2*n} offset1:{2*n+5}")
        p(f"ds_read2st64_b32 {v(a+2,2)}, v81 offset0:{2*n+10} offset1:{2*n+15}")
    p("s_waitcnt lgkmcnt(4)")
    p(f"{MF32} {v(D,16)}, {v(G,4)}, {v(ZD,4)}, 0")
    p("s_waitcnt lgkmcnt(2)")
    p(f"{MF32} {v(D+16,16)}, {v(G,4)}, {v(ZD+4,4)}, 0")
    p("s_waitcnt lgkmcnt(0)")
    def wr(n, d, tmp):
        for m in range(4): p(f"v_cvt_pk_bf16_f32 v{tmp+m}, v{d+2*m}, v{d+2*m+1}")
        for m in range(4):
            p(f"ds_write_b32 v{EA}, v{tmp+m} offset:{E3 + 5120*(m//2) + 1280*(m%2) + 512*n}")
    wr(0, D, TM)
    p(f"{MF32} {v(D,16)}, {v(G,4)}, {v(ZD+8,4)}, 0")
    wr(1, D+16, TM+4)
    for m in range(4): p(f"v_cvt_pk_bf16_f32 v{ZD+m}, v{D+2*m}, v{D+2*m+1}")
    p("s_cmp_ge_u32 s3, 2\ns_cbranch_scc1 L_b3_skip")
    for m in range(4):
        p(f"ds_write_b32 v{EA}, v{ZD+m} offset:{E3 + 5120*(m//2) + 1280*(m%2) + 1024}")
    p.label("L_b3_skip")
    p("s_waitcnt lgkmcnt(0)\ns_barrier")
    A = 68
    for row in (0, 1):
        if row == 1: p(f"v_add_u32 v{EA+1}, 1280, v{EA+1}\nv_add_u32 v{EA+2}, 1280, v{EA+2}")
        a = A + 8 * row
        p(f"ds_read2_b32 {v(a,2)}, v{EA+1} offset0:0 offset1:18")
        p(f"ds_read2_b32 {v(a+2,2)}, v{EA+1} offset0:36 offset1:54")
        p(f"ds_read2_b32 {v(a+4,2)}, v{EA+2} offset0:54 offset1:36")
        p(f"ds_read2_b32 {v(a+6,2)}, v{EA+2} offset0:18 offset1:0")
    for row in (0, 1):
        p(f"s_waitcnt lgkmcnt({4 - 4*row})")
        for t in (0, 1):
            for part in (0, 1):
                d = D + 8 * (2 * row + t) + 4 * part
                p(f"{MF16} {v(d,4)}, {v(A+8*row,4)}, {v(b3(part,0,t),4)}, 0")
                p(f"{MF16} {v(d,4)}, {v(A+8*row+4,4)}, {v(b3(part,1,t),4)}, {v(d,4)}")
    for row in (0, 1):
        for t in (0, 1):
            i = 2 * row + t
            cmul_tw(p, D+8*i, D+8*i+4, TWC+4*t, TWS+4*t, TM, TM+4, False)
            for r in range(4): p(f"v_cvt_pk_bf16_f32 v{A+4*i+r}, v{TM+r}, v{TM+4+r}")
    for row in (0, 1):
        for bt in (0, 1):
            for t in (0, 1):
                d = D + 8 * (2 * row + bt) + 4 * t
                p(f"{MF16} {v(d,4)}, {v(A+8*row+4*t,4)}, {v(BL+4*bt,4)}, 0")
    for i in range(4):
        for m in range(4): p(f"v_cvt_pk_bf16_f32 v{A+4*i+m}, v{D+8*i+2*m}, v{D+8*i+2*m+1}")
    for row in (0, 1):
        p(f"buffer_store_dwordx4 {v(A+8*row,4)}, v{EA+3}, s[{SO}:{SO+3}], s{12+row} offen offset:1152 {OUTFLAG}")
    p("s_mov_b32 exec_lo, 0x00030003\ns_mov_b32 exec_hi, 0x00030003")
    for row in (0, 1):
        p(f"buffer_store_dwordx4 {v(A+8*row+4,4)}, v{EA+3}, s[{SO}:{SO+3}], s{12+row} offen offset:{1152+1024} {OUTFLAG}")
    endpgm(p)

W_EXP = {0: [0,1,2,3,4,5,6,7,8, 512,516,520, 1024,1032, 1280,1288],
         1: [256,256,258,260,260,260,262,264,264, 768,772,776, 1536,1544, 1792,1800]}

def transpose_tile(p, SB, DB, dsrd, s_dst, dpitch, flag, t0, mid=None):
    a0, a1, a2, d = t0, t0+1, t0+2, t0+4
    p(f"""
    v_bfe_u32 v{a0}, v0, 2, 2
    v_lshrrev_b32 v{a1}, 4, v0
    v_lshl_add_u32 v{a0}, v{a1}, 3, v{a0}
    v_lshlrev_b32 v{a0}, 7, v{a0}
    v_and_b32 v{a2}, 3, v0
    v_lshl_add_u32 v{a0}, v{a2}, 3, v{a0}
    s_lshl_b32 s13, s3, 5
    v_add_u32 v{a0}, s13, v{a0}
    """)
    for m in range(2):
        for q in range(2):
            p(f"ds_read_b64_tr_b16 {v(d+4*m+2*q,2)}, v{a0} offset:{SB + 4096*m + 512*q}")
    p(f"""
    s_mul_i32 s13, s3, 2304
    v_and_b32 v{a2}, 15, v0
    v_mul_u32_u24 v{a2}, 144, v{a2}
    v_lshl_add_u32 v{a2}, v{a1}, 4, v{a2}
    v_add_u32 v{a2}, s13, v{a2}
    v_lshrrev_b32 v{a1}, 3, v0
    v_mul_u32_u24 v{a0+3}, 144, v{a1}
    v_mul_u32_u24 v{a1}, {dpitch}, v{a1}
    v_and_b32 v{a0}, 7, v0
    v_lshl_add_u32 v{a1}, v{a0}, 4, v{a1}
    v_lshl_add_u32 v{a0}, v{a0}, 4, v{a0+3}
    v_add_u32 v{a0}, s13, v{a0}
    s_add_u32 s13, s{s_dst}, {8*dpitch}
    s_waitcnt lgkmcnt(2)
    ds_write_b128 v{a2}, {v(d,4)} offset:{DB}
    s_waitcnt lgkmcnt(1)
    ds_write_b128 v{a2}, {v(d+4,4)} offset:{DB+64}
    s_waitcnt lgkmcnt(0)
    ds_read_b128 {v(d,4)}, v{a0} offset:{DB}
    ds_read_b128 {v(d+4,4)}, v{a0} offset:{DB+8*144}
    """)
    if mid: mid()
    p(f"""
    s_waitcnt lgkmcnt(1)
    buffer_store_dwordx4 {v(d,4)}, v{a1}, s[{dsrd}:{dsrd+3}], s{s_dst} offen {flag}
    s_waitcnt lgkmcnt(0)
    buffer_store_dwordx4 {v(d+4,4)}, v{a1}, s[{dsrd}:{dsrd+3}], s13 offen {flag}
    """)

def role_a(p):
    sid = 2
    CP = 4160
    UB = 32768
    SU, SUT, SYT, SO = 48, 52, 56, 60
    p(f"""
    s_sub_u32 s2, s2, {NB}
    s_and_b32 s4, s3, 1
    s_lshl_b32 s4, s4, 7
    s_lshl_b32 s5, s{sid}, 8
    s_add_u32 s4, s4, s5
    v_lshl_add_u32 v1, v0, 1, s4
    s_lshl_b32 s6, s{sid}, 1
    s_and_b32 s7, s6, 2
    s_and_b32 s6, s6, -4
    s_waitcnt lgkmcnt(0)
    s_add_u32 s8, s{P_LDT}, s6
    s_addc_u32 s9, s{P_LDT+1}, 0
    s_add_u32 s10, s{P_DSK}, s6
    s_addc_u32 s11, s{P_DSK+1}, 0
    s_load_dword s12, s[8:9], 0
    s_load_dword s71, s[10:11], 0
    """)
    srd(p, SU, P_U, 0, 2359296)
    srd(p, SUT, P_WS, WS_UT, 576 * TP)
    srd(p, SYT, P_WS, WS_YT, 576 * TP)
    p(f"""
    s_lshr_b32 s64, s{sid}, 6
    s_bfe_u32 s65, s{sid}, 0x20004
    s_lshl_b32 s65, s65, 3
    s_and_b32 s4, s{sid}, 7
    s_add_u32 s65, s65, s4
    v_lshrrev_b32 v98, 3, v0
    v_and_b32 v99, 7, v0
    v_mov_b32 v100, -1
    v_mov_b32 v101, -1
    v_mov_b32 v102, -1
    v_mov_b32 v103, -1
    s_bitcmp1_b32 s{sid}, 3
    s_cbranch_scc1 L_a_notile
    v_mul_u32_u24 v104, {TP}, v98
    v_lshl_add_u32 v104, v99, 4, v104
    s_lshl_b32 s66, s64, 2
    s_add_u32 s66, s66, s3
    s_mul_i32 s66, s66, {16*TP}
    s_lshl_b32 s5, s65, 7
    s_add_u32 s66, s66, s5
    s_add_u32 s5, s66, {8*TP}
    buffer_store_dwordx4 v[100:103], v104, s[{SUT}:{SUT+3}], s66 offen sc1
    buffer_store_dwordx4 v[100:103], v104, s[{SUT}:{SUT+3}], s5 offen sc1
    v_mul_u32_u24 v104, 1152, v98
    v_lshl_add_u32 v104, v99, 4, v104
    s_lshl_b32 s4, s65, 2
    s_add_u32 s4, s4, s3
    s_mul_i32 s4, s4, {16*1152}
    s_lshl_b32 s5, s64, 7
    s_add_u32 s4, s4, s5
    s_add_u32 s5, s4, {8*1152}
    s_lshl_b32 s6, s3, 11
    s_mov_b32 m0, s6
    buffer_load_dwordx4 v104, s[{SU}:{SU+3}], s4 offen lds
    s_add_u32 m0, s6, 1024
    buffer_load_dwordx4 v104, s[{SU}:{SU+3}], s5 offen lds
    L_a_notile:
    global_load_ushort v2, v1, s[{P_ARE}:{P_ARE+1}]
    global_load_ushort v3, v1, s[{P_AIM}:{P_AIM+1}]
    global_load_ushort v4, v1, s[{P_BRE}:{P_BRE+1}]
    global_load_ushort v5, v1, s[{P_BIM}:{P_BIM+1}]
    global_load_ushort v6, v1, s[{P_CRE}:{P_CRE+1}]
    global_load_ushort v7, v1, s[{P_CIM}:{P_CIM+1}]
    s_mul_i32 s67, s{sid}, {TP}
    s_lshl_b32 s68, s3, 10
    s_add_u32 s69, s67, s68
    v_lshlrev_b32 v105, 4, v0
    s_and_b32 s4, s3, 1
    s_lshl_b32 s4, s4, 13
    s_lshr_b32 s5, s3, 1
    s_lshl_b32 s5, s5, 14
    s_add_u32 s4, s4, s5
    v_and_b32 v8, 7, v0
    v_lshlrev_b32 v8, 4, v8
    v_lshl_add_u32 v8, v0, 7, v8
    v_add_u32 v8, s4, v8
    s_lshl_b32 s7, s7, 3
    s_mul_i32 s4, s3, 576
    s_add_u32 s4, s4, s{sid}
    s_lshl_b32 s4, s4, 5
    s_add_u32 s70, s4, {WS_FA1}
    s_waitcnt lgkmcnt(0)
    s_lshr_b32 s12, s12, s7
    s_lshl_b32 s12, s12, 16
    s_lshr_b32 s71, s71, s7
    s_lshl_b32 s71, s71, 16
    v_mov_b32 v9, {flit(LOG2E)}
    v_mul_f32 v10, s12, v9
    v_exp_f32 v10, v10
    v_cvt_pk_bf16_f32 v10, v10, v10
    v_and_b32 v10, 0xffff0000, v10
    """)
    p(f"s_bitcmp1_b32 s{sid}, 3\ns_cbranch_scc1 L_a_odd")
    p("s_waitcnt vmcnt(6)")
    tag_issue(p)
    p("s_barrier")
    stamp(p, 1)
    transpose_tile(p, 0, 8192, SUT, 66, TP, "sc1", 108, lambda: (get_nonce(p, 106), put_flag(p, 70, 106)))
    p("s_barrier")
    p("s_waitcnt vmcnt(3)\ns_branch L_a_kgen")
    p.label("L_a_odd")
    p("s_waitcnt vmcnt(0)")
    p.label("L_a_kgen")
    p.hist = []
    stamp(p, 7)
    p(f"""
    v_lshlrev_b32 v2, 16, v2
    v_lshlrev_b32 v3, 16, v3
    v_mul_f32 v2, v10, v2
    v_mul_f32 v3, v10, v3
    v_mul_f32 v2, v9, v2
    v_mul_f32 v3, 0.15915494, v3
    """)
    def epow(m, dst, conj):
        if m == 1: p("v_exp_f32 v12, v2\nv_fract_f32 v13, v3")
        else: p(f"v_mul_f32 v12, {flit(float(m))}, v2\nv_mul_f32 v13, {flit(float(m))}, v3\nv_exp_f32 v12, v12\nv_fract_f32 v13, v13")
        p(f"v_cos_f32 v14, v13\nv_sin_f32 v13, v13\nv_mul_f32 v{dst}, v12, v14")
        if conj: p(f"v_mul_f32_e64 v{dst+1}, -v12, v13")
        else: p(f"v_mul_f32 v{dst+1}, v12, v13")
    def cmul(dst, z, e):
        p(f"v_pk_mul_f32 {v(dst,2)}, {v(z,2)}, {v(e,2)} op_sel:[0,0] op_sel_hi:[1,0]")
        p(f"v_pk_fma_f32 {v(dst,2)}, {v(z,2)}, {v(e,2)}, {v(dst,2)} op_sel:[1,1,0] op_sel_hi:[0,1,1] neg_lo:[1,0,0]")
    Z, PK = 20, 88
    def emit(cols):
        k = 0
        for part in (0, 1):
            for q in range(4):
                pk = PK + 4 * (k % 2); k += 1
                for m in range(4):
                    p(f"v_cvt_pk_bf16_f32 v{pk+m}, v{cols[8*q+2*m]+part}, v{cols[8*q+2*m+1]+part}")
                chi = 4 * part + q
                if chi == 0: p(f"ds_write_b128 v8, {v(pk,4)}")
                else: p(f"v_xor_b32 v{96+k%2}, {16*chi}, v8\nds_write_b128 v{96+k%2}, {v(pk,4)}")
    p("s_cmp_ge_u32 s3, 2\ns_cbranch_scc1 L_kg_p")
    epow(1, 16, False); epow(256, 18, False)
    p("v_lshlrev_b32 v4, 16, v4\nv_lshlrev_b32 v5, 16, v5\nv_lshlrev_b32 v6, 16, v6\nv_lshlrev_b32 v7, 16, v7\nv_mul_f32 v4, v10, v4\nv_mul_f32 v5, v10, v5")
    reg = {}; nxt = [Z]
    def new(e):
        reg[e] = nxt[0]; nxt[0] += 2; return reg[e]
    cmul(new(0), 6, 4)
    for j in range(1, 9): cmul(new(j), reg[j-1], 16)
    for e in (0, 2, 4, 6, 8): cmul(new(256+e), reg[e], 18)
    for base in (512, 768):
        for e in (0, 4, 8): cmul(new(base+e), reg[base-256+e], 18)
    for base in (1024, 1280, 1536, 1792):
        for e in (0, 8): cmul(new(base+e), reg[base-256+e], 18)
    cols = []
    for rho in range(32):
        h = (rho >> 2) & 1; rg = 4 * (rho >> 3) + (rho & 3)
        cols.append(reg[W_EXP[h][rg]])
    emit(cols)
    p("s_branch L_kg_join")
    p.label("L_kg_p"); p.hist = []
    epow(8, 16, True)
    p(f"v_mov_b32 v{Z}, 1.0\nv_mov_b32 v{Z+1}, 0\nv_mov_b32 v{Z+2}, v16\nv_mov_b32 v{Z+3}, v17")
    for c in range(2, 32): cmul(Z+2*c, Z+2*c-2, 16)
    emit([Z+2*c for c in range(32)])
    p.label("L_kg_join")
    stamp(p, 8)
    p(f"buffer_store_dwordx4 v[100:103], v105, s[{SYT}:{SYT+3}], s69 offen sc1")
    p(f"s_bitcmp0_b32 s{sid}, 3\ns_cbranch_scc1 L_a_hastag")
    tag_issue(p)
    p.label("L_a_hastag")
    p("s_waitcnt lgkmcnt(0)")
    stamp(p, 9)
    p("s_barrier")
    p.hist = []
    stamp(p, 2)
    get_nonce(p, 106)
    p("s_cmp_lg_u32 s3, 0\ns_cbranch_scc1 L_a_uload")
    p(f"""
    v_lshrrev_b32 v2, 5, v0
    v_bfe_u32 v3, v0, 3, 1
    v_lshl_add_u32 v2, v2, 2, v3
    v_bfe_u32 v3, v0, 2, 1
    v_bfe_u32 v4, v0, 4, 1
    v_lshlrev_b32 v4, 1, v4
    v_lshl_add_u32 v3, v3, 2, v4
    v_bfe_u32 v4, v0, 1, 1
    v_add_u32 v3, v3, v4
    v_and_b32 v4, 1, v0
    v_lshlrev_b32 v4, 3, v4
    v_xor_b32 v5, v3, v2
    v_lshl_add_u32 v5, v5, 4, v4
    v_lshl_add_u32 v6, v2, 7, v5
    v_add_u32 v2, 2, v2
    v_xor_b32 v5, v3, v2
    v_lshl_add_u32 v5, v5, 4, v4
    v_lshl_add_u32 v7, v2, 7, v5
    """)
    FB, D = 32, 16
    def rdk(k):
        b = FB + 8 * (k % 4)
        p(f"ds_read_b64_tr_b16 {v(b,2)}, v6 offset:{1024*k}")
        p(f"ds_read_b64_tr_b16 {v(b+2,2)}, v7 offset:{1024*k}")
        p(f"ds_read_b64_tr_b16 {v(b+4,2)}, v6 offset:{16384+1024*k}")
        p(f"ds_read_b64_tr_b16 {v(b+6,2)}, v7 offset:{16384+1024*k}")
    for k in range(3): rdk(k)
    KB = 16
    p(f"""
    v_and_b32 v8, 31, v0
    v_lshlrev_b32 v8, 4, v8
    v_sub_u32 v8, {4080 - 3072}, v8
    v_lshrrev_b32 v9, 5, v0
    v_lshlrev_b32 v9, 9, v9
    v_sub_u32 v10, v8, v9
    v_add_u32 v10, 2048, v10
    v_sub_u32 v11, v8, v9
    v_sub_u32 v11, v11, v9
    v_add_u32 v11, 512, v11
    v_and_b32 v12, 1, v0
    v_cmp_eq_u32 s[4:5], 0, v12
    v_cmp_eq_u32 vcc, 0, v0
    v_mov_b32 v13, s71
    v_cndmask_b32 v13, 0, v13, vcc
    """)
    for k in range(16):
        p(f"s_waitcnt lgkmcnt({min(8, 4*(15-k))})")
        b = FB + 8 * (k % 4)
        p(f"{MF32} {v(D,16)}, {v(b,4)}, {v(b+4,4)}, {'0' if k == 0 else v(D,16)}")
        if k + 3 < 16: rdk(k + 3)
    p(f"v_add_f32 v{D}, v{D}, v13")
    p(f"v_cndmask_b32 v14, v{D+13}, v{D+12}, s[4:5]\nv_cndmask_b32 v15, v{D+15}, v{D+14}, s[4:5]")
    E0 = [D+e for e in range(9)]
    a, b, c = D+9, D+10, D+11
    E2 = [a,a,a,b,b,b,c,c,c]
    E3a = [D+12]*4 + [14] + [D+13]*4
    E3b = [D+14]*4 + [15] + [D+15]*4
    k = 0
    p(f"v_add_u32 v64, {KB + 2*CP - 4}, v10\nv_add_u32 v65, {KB + 2*CP - 4}, v11\nv_add_u32 v66, {KB + CP - 4}, v10\nv_add_u32 v67, {KB + CP - 4}, v11")
    for E, va, off in ((E0, 10, 1024), (E2, 10, 0), (E3a, 11, 512), (E3b, 11, 0)):
        for sh in (0, 1):
            pk = 32 + 4 * k; k += 1
            for m in range(4):
                p(f"v_cvt_pk_bf16_f32 v{pk+m}, v{E[7+sh-2*m]}, v{E[6+sh-2*m]}")
            vb = 64 + 2 * sh + (va - 10)
            if off < 1000:
                p(f"ds_write2_b32 v{vb}, v{pk}, v{pk+1} offset0:{off//4} offset1:{off//4+1}")
                p(f"ds_write2_b32 v{vb}, v{pk+2}, v{pk+3} offset0:{off//4+2} offset1:{off//4+3}")
            else:
                for m in range(4): p(f"ds_write_b32 v{vb}, v{pk+m} offset:{off+4*m}")
            if sh == 0: p(f"ds_write_b128 v{va}, {v(pk,4)} offset:{KB + off}")
            else:
                p(f"ds_write_b64 v{va}, {v(pk,2)} offset:{KB + 3*CP - 8 + off}")
                p(f"ds_write_b64 v{va}, {v(pk+2,2)} offset:{KB + 3*CP + off}")
    p(f"""
    v_lshrrev_b32 v2, 4, v0
    v_mul_u32_u24 v2, {CP}, v2
    v_and_b32 v3, 15, v0
    v_lshl_add_u32 v2, v3, 2, v2
    v_cvt_pk_bf16_f32 v4, v{D}, 0
    v_readfirstlane_b32 s4, v4
    v_mov_b32 v4, 0
    """)
    p(f"""
    v_writelane_b32 v4, s4, 17
    v_writelane_b32 v4, s4, 48
    s_mov_b32 exec_lo, 0xfffefffc
    s_mov_b32 exec_hi, 0xfffffffe
    ds_write_b32 v2, v4 offset:{KB + 4088}
    s_mov_b64 exec, -1
    s_branch L_a_conv
    """)
    p.label("L_a_uload"); p.hist = []
    p(f"""
    s_cmp_eq_u32 s3, 3
    s_cbranch_scc1 L_a_zero
    s_bfe_u32 s4, s{sid}, 0x20004
    s_mul_i32 s4, s4, {576*32}
    s_lshl_b32 s5, s64, 11
    s_add_u32 s4, s4, s5
    s_add_u32 s4, s4, {WS_FA1}
    v_and_b32 v2, 55, v0
    v_lshl_add_u32 v2, v2, 5, s4
    """)
    poll(p, lambda: p(f"global_load_dword v3, v2, s[{P_WS}:{P_WS+1}] sc1"), lambda: p(f"v_cmp_ne_u32 vcc, s{S_NONCE}, v3"))
    p(f"s_lshl_b32 s4, s3, 11\ns_add_u32 s5, s67, s4\ns_sub_u32 s5, s5, 2048\ns_add_u32 s4, s4, {UB + 512 - 2048}\nv_add_u32 v3, s4, v105")
    def ldU():
        p(f"buffer_load_dwordx4 v[16:19], v105, s[{SUT}:{SUT+3}], s5 offen sc1")
        p(f"buffer_load_dwordx4 v[20:23], v105, s[{SUT}:{SUT+3}], s5 offen offset:1024 sc1")
    poll(p, ldU, lambda: any_sentinel(p, range(16, 24), 4))
    p("ds_write_b128 v3, v[16:19]\nds_write_b128 v3, v[20:23] offset:1024\ns_branch L_a_conv")
    p.label("L_a_zero"); p.hist = []
    p(f"v_mov_b32 v2, 0\nv_mov_b32 v3, 0\nv_lshlrev_b32 v4, 3, v0\nds_write_b64 v4, v[2:3] offset:{UB}")
    p.label("L_a_conv"); p.hist = []
    B, ACC, AF = 16, 80, 112
    p(f"""
    v_and_b32 v2, 3, v0
    v_sub_u32 v2, 3, v2
    v_mul_u32_u24 v2, {CP}, v2
    v_lshrrev_b32 v3, 4, v0
    v_lshl_add_u32 v2, v3, 4, v2
    v_bfe_u32 v4, v0, 2, 2
    v_lshlrev_b32 v4, 3, v4
    v_sub_u32 v2, v2, v4
    s_lshl_b32 s12, s3, 6
    s_sub_u32 s13, {KB + 4056 - 3840}, s12
    v_add_u32 v2, s13, v2
    v_and_b32 v4, 15, v0
    v_lshlrev_b32 v5, 5, v4
    v_mov_b32 v7, v105
    v_lshl_add_u32 v5, v3, 4, v5
    s_sub_u32 s13, {UB + 224}, s12
    v_add_u32 v3, s13, v5
    v_add_u32 v8, s68, v105
    s_lshl_b32 s12, s3, 13
    v_lshrrev_b32 v9, 5, v0
    v_lshlrev_b32 v9, 12, v9
    v_bfe_u32 v10, v0, 1, 4
    v_lshl_add_u32 v9, v10, 4, v9
    v_and_b32 v10, 1, v0
    v_lshl_add_u32 v9, v10, 9, v9
    v_add_u32 v9, s12, v9
    s_waitcnt vmcnt(0) lgkmcnt(0)
    s_barrier
    s_cmp_lg_u32 s3, 3
    s_cbranch_scc1 L_a_nf2
    s_lshl_b32 s4, s{sid}, 5
    s_add_u32 s4, s4, {WS_FA2}
    """)
    put_flag(p, 4, 10)
    p.label("L_a_nf2")
    stamp(p, 3)
    def rda(m):
        a = AF + 4 * (m % 4)
        p(f"ds_read_b64 {v(a,2)}, v2 offset:{256*(15-m)}")
        p(f"ds_read_b64 {v(a+2,2)}, v2 offset:{256*(15-m)+8}")
    rda(0)
    for b in range(1, 16, 2): p(f"ds_read_b128 {v(B+4*b,4)}, v3 offset:{256*b}")
    rda(1)
    for T in range(8):
        p("s_waitcnt lgkmcnt(9)")
        p(f"{MF16} {v(ACC+4*T,4)}, {v(AF,4)}, {v(B+4*(2*T+1),4)}, 0")
        p(f"ds_read_b128 {v(B+8*T,4)}, v3 offset:{512*T}")
    rda(2); rda(3)
    for m in range(1, 16):
        p(f"s_waitcnt lgkmcnt({2 * (min(15, m + 2) - m)})")
        a = AF + 4 * (m % 4)
        for T in range(m // 2, 8):
            b = 2 * T - m + 1
            p(f"{MF16} {v(ACC+4*T,4)}, {v(a,4)}, {v(B+4*b,4)}, {v(ACC+4*T,4)}")
        if m + 3 < 16: rda(m + 3)
    p("s_barrier")
    stamp(p, 4)
    for T in range(8): p(f"ds_write_b128 v8, {v(ACC+4*T,4)} offset:{4096*T}")
    p("s_waitcnt lgkmcnt(0)\ns_barrier")
    for e in range(2):
        for q in range(4): p(f"ds_read_b128 {v(B+16*e+4*q,4)}, v9 offset:{1024*q + 256*e}")
    for pi in range(2):
        b = B + 16 * pi
        p(f"s_waitcnt lgkmcnt({4 - 4*pi})")
        for h in (0, 2):
            p(f"v_pk_add_f32 {v(b+h,2)}, {v(b+h,2)}, {v(b+4+h,2)}")
            p(f"v_pk_add_f32 {v(b+8+h,2)}, {v(b+8+h,2)}, {v(b+12+h,2)}")
        for h in (0, 2):
            p(f"v_pk_add_f32 {v(b+h,2)}, {v(b+h,2)}, {v(b+8+h,2)}")
        p(f"v_cvt_pk_bf16_f32 v{12+2*pi}, v{b}, v{b+1}\nv_cvt_pk_bf16_f32 v{13+2*pi}, v{b+2}, v{b+3}")
    p(f"buffer_store_dwordx4 v[12:15], v7, s[{SYT}:{SYT+3}], s69 offen sc1")
    stamp(p, 5)
    p(f"s_bitcmp0_b32 s{sid}, 3\ns_cbranch_scc1 L_a_end")
    srd(p, SO, P_OUT, 0, 2048 * 2304)
    p(f"""
    s_lshl_b32 s4, s64, 11
    s_add_u32 s4, s4, {WS_FA2}
    v_lshl_add_u32 v2, v0, 5, s4
    """)
    poll(p, lambda: p(f"global_load_dword v3, v2, s[{P_WS}:{P_WS+1}] sc1"), lambda: p(f"v_cmp_ne_u32 vcc, s{S_NONCE}, v3"))
    p(f"""
    v_lshrrev_b32 v98, 3, v0
    v_and_b32 v99, 7, v0
    v_lshlrev_b32 v105, 4, v0
    v_mul_u32_u24 v2, {TP}, v98
    v_lshl_add_u32 v2, v99, 4, v2
    s_lshl_b32 s4, s64, 2
    s_add_u32 s4, s4, s3
    s_mul_i32 s4, s4, {16*TP}
    s_lshl_b32 s5, s65, 7
    s_add_u32 s4, s4, s5
    s_add_u32 s5, s4, {8*TP}
    s_lshl_b32 s6, s3, 11
    v_add_u32 v3, s6, v105
    s_lshl_b32 s6, s65, 2
    s_add_u32 s6, s6, s3
    s_mul_i32 s6, s6, {16*2304}
    s_lshl_b32 s7, s64, 7
    s_add_u32 s6, s6, s7
    s_barrier
    """)
    def ldY():
        p(f"buffer_load_dwordx4 v[16:19], v2, s[{SYT}:{SYT+3}], s4 offen sc1")
        p(f"buffer_load_dwordx4 v[20:23], v2, s[{SYT}:{SYT+3}], s5 offen sc1")
    poll(p, ldY, lambda: any_sentinel(p, range(16, 24), 4))
    p("ds_write_b128 v3, v[16:19]\nds_write_b128 v3, v[20:23] offset:1024\ns_waitcnt lgkmcnt(0)\ns_barrier")
    stamp(p, 6)
    transpose_tile(p, 0, 8192, SO, 6, 2304, OUTFLAG, 108)
    p.label("L_a_end")
    endpgm(p)

def build():
    name = NAME + "_kernel"
    p = Prog()
    p.raw(f".globl {name}\n.p2align 8\n.type {name},@function\n{name}:")
    p("s_memrealtime s[12:13]")
    if STAMP:
        stamp(p, 0); p("s_mov_b32 s79, s2")
        for i in range(1, NST): p(f"s_mov_b32 s{80+2*i}, 0")
    p(f"""
    s_load_dwordx16 s[16:31], s[0:1], 0
    s_load_dwordx8 s[32:39], s[0:1], 64
    s_load_dwordx4 s[40:43], s[0:1], 96
    s_load_dwordx2 s[44:45], s[0:1], 112
    v_lshrrev_b32 v1, 6, v0
    v_and_b32 v0, 63, v0
    v_readfirstlane_b32 s3, v1
    s_cmp_ge_u32 s2, {NB}
    s_cbranch_scc1 L_not_b
    """)
    role_b(p)
    p.raw(".p2align 6")
    p.label("L_not_b"); p.hist = []
    p(f"s_cmp_lt_u32 s2, {NB+NA}\ns_cbranch_scc1 L_role_a\ns_endpgm")
    p.label("L_role_a")
    role_a(p)
    desc = f"""
.section .rodata,"a"
.p2align 6
.amdhsa_kernel {name}
  .amdhsa_next_free_vgpr 128
  .amdhsa_next_free_sgpr {102 if STAMP else 80}
  .amdhsa_accum_offset 128
  .amdhsa_group_segment_fixed_size 0
  .amdhsa_kernarg_size 120
  .amdhsa_user_sgpr_count 2
  .amdhsa_user_sgpr_kernarg_segment_ptr 1
  .amdhsa_system_sgpr_workgroup_id_x 1
.end_amdhsa_kernel
"""
    ref = open("cdna_kernels/" + NAME + ".s.ref").read().split("\n")
    head = [l for l in ref if l.startswith(";") and "@launch" not in l]
    return "\n".join(head) + f"\n; layout YPITCH={YPITCH} TP={TP}\n; @launch grid=({NB+NA},1,1) block=(256,1,1) lds={LDS_BYTES}\n" + '.amdgcn_target "amdgcn-amd-amdhsa--gfx950"\n.text\n' + p.text() + desc

if __name__ == "__main__":
    out = sys.argv[1] if len(sys.argv) > 1 else "cdna_kernels/" + NAME + ".s"
    open(out, "w").write(build())
```
